```python
import torch

def _softmax(x, axis=-1):
    return torch.softmax(x, dim=axis)

def _gelu(x):
    return torch.nn.functional.gelu(x, approximate='tanh')

def _silu(x):
    return torch.nn.functional.silu(x)

def _sigmoid(x):
    return torch.sigmoid(x)

def _layernorm(x, axis=-1, eps=1e-05):
    m = x.mean(dim=axis, keepdim=True)
    v = x.var(dim=axis, keepdim=True, unbiased=False)
    return (x - m) / torch.sqrt(v + eps)

def _scatter_add(tgt, idx, src, axis=0):
    return tgt.clone().index_add_(axis, idx, src)

def _segment_sum(src, seg, n):
    out = torch.zeros((n,) + src.shape[1:], dtype=src.dtype)
    return out.index_add_(0, seg, src)

def _pad(x, pw):
    flat = tuple((v for pair in reversed(pw) for v in pair))
    return torch.nn.functional.pad(x, flat)
kernel_name = 'adaLN_cond__ssm_conv_s4d__dense_activation_silu__prompt'

def setup_inputs():

    _w = lambda a: (lambda t: t.to(torch.bfloat16) if t.is_floating_point() else t)(torch.as_tensor(a))

    def _A_setup():
        Bsz, L, D, N = (1, 2048, 640, 128)
        return {'u': _w((lambda *s: torch.randn(*s, dtype=torch.bfloat16) * 0.05)(Bsz, L, D)), 'log_A_real': _w((lambda *s: torch.randn(*s, dtype=torch.bfloat16) * 3.2)(D, N) * 0.5), 'A_imag': _w((lambda *s: torch.randn(*s, dtype=torch.bfloat16) * 0.05)(D, N) * 3.14), 'C_real': _w((lambda *s: torch.randn(*s, dtype=torch.bfloat16) * 0.1)(D, N) / N ** 0.5), 'C_imag': _w((lambda *s: torch.randn(*s, dtype=torch.bfloat16) * 0.2)(D, N) / N ** 0.5), 'log_dt': _w((lambda *s: torch.randn(*s, dtype=torch.bfloat16) * 0.05)(D) * 0.5 - 4.0), 'D_skip': _w((lambda *s: torch.randn(*s, dtype=torch.bfloat16) * 0.05)(D))}
    _A_in = _A_setup()

    def _B_setup():
        B, S, D, F = (1, 2048, 640, 1728)
        return {'x': _w((lambda *s: torch.randn(*s, dtype=torch.bfloat16) * 0.05)(B, S, D)), 'w1': _w((lambda *s: torch.randn(*s, dtype=torch.bfloat16) * 3.2)(D, F) * D ** (-0.5)), 'w2': _w((lambda *s: torch.randn(*s, dtype=torch.bfloat16) * 0.2)(F, D) * F ** (-0.5))}
    _B_in = _B_setup()
    return {'A_u': _A_in['u'], 'A_log_A_real': _A_in['log_A_real'], 'A_A_imag': _A_in['A_imag'], 'A_C_real': _A_in['C_real'], 'A_C_imag': _A_in['C_imag'], 'A_log_dt': _A_in['log_dt'], 'A_D_skip': _A_in['D_skip'], 'B_x': _B_in['x'], 'B_w1': _B_in['w1'], 'B_w2': _B_in['w2'], 'c': _w((lambda *s: torch.randn(*s, dtype=torch.bfloat16) * 0.2)(1, 640) * 8.0), 'w_mod': _w((lambda *s: torch.randn(*s, dtype=torch.bfloat16) * 0.2)(640, 6 * 640) * 640 ** (-0.5) * 8.0)}

def reference(A_u, A_log_A_real, A_A_imag, A_C_real, A_C_imag, A_log_dt, A_D_skip, B_x, B_w1, B_w2, c, w_mod):

    def _A_ref(u, log_A_real, A_imag, C_real, C_imag, log_dt, D_skip):
        L = u.shape[1]
        dt = torch.exp(log_dt)
        A = -torch.exp(log_A_real) + 1j * A_imag
        C = (C_real + 1j * C_imag) * dt[:, None]
        pos = (lambda x, dt: x.to(dt))(torch.arange(L), log_dt.dtype)
        P = torch.exp((A * dt[:, None])[:, :, None] * pos[None, None, :])
        K = 2.0 * torch.einsum('dn,dnl->dl', C, P).real
        L2 = 2 * L
        u_t = (lambda x, *d: x.permute(*d))(u, 0, 2, 1)
        Kf = (lambda x, *a, **k: torch.fft.rfft(x.float(), *a, **k))(K, L2)
        Uf = (lambda x, *a, **k: torch.fft.rfft(x.float(), *a, **k))(u_t, L2)
        y = (lambda x, *a, **k: torch.fft.irfft(x, *a, **k).to(torch.bfloat16))(Uf * Kf[None, :, :], L2)[:, :, :L]
        y = (lambda x, *d: x.permute(*d))(y, 0, 2, 1)
        return y + u * D_skip[None, None, :]

    def _B_ref(x, w1, w2):
        h = torch.einsum('bsd,df->bsf', x, w1)
        h = _silu(h)
        out = torch.einsum('bsf,fd->bsd', h, w2)
        return out
    x = A_u
    mod = (_silu(c) @ w_mod).reshape(c.shape[0], 6, 1, -1)
    sa, ca, ga, sb, cb, gb = (mod[:, 0].clone(), mod[:, 1].clone(), mod[:, 2].clone(), mod[:, 3].clone(), mod[:, 4].clone(), mod[:, 5].clone())
    h = _layernorm(x, axis=-1) * (1 + ca) + sa
    x = x + ga * _A_ref(h, A_log_A_real, A_A_imag, A_C_real, A_C_imag, A_log_dt, A_D_skip)
    h = _layernorm(x, axis=-1) * (1 + cb) + sb
    x = x + gb * _B_ref(h, B_w1, B_w2)
    return x
```

```python
import re

REG_RE = re.compile(r'^(-|abs\()?([vas])(\d+)\)?$')
RNG_RE = re.compile(r'^(-|abs\()?([vas])\[(\d+):(\d+)\]\)?$')

def regs_of(op):
    op = op.strip()
    m = REG_RE.match(op)
    if m: return [(m.group(2), int(m.group(3)))]
    m = RNG_RE.match(op)
    if m: return [(m.group(2), i) for i in range(int(m.group(3)), int(m.group(4)) + 1)]
    if op == 'vcc': return [('s', 'vcc_lo'), ('s', 'vcc_hi')]
    if op in ('vcc_lo', 'vcc_hi', 'm0', 'exec_lo', 'exec_hi'): return [('s', op)]
    if op == 'exec': return [('s', 'exec_lo'), ('s', 'exec_hi')]
    return []

TRANS = ('v_exp_f32', 'v_log_f32', 'v_rcp_f32', 'v_rsq_f32', 'v_sqrt_f32', 'v_sin_f32', 'v_cos_f32')

class Ins:
    __slots__ = ('text', 'op', 'w', 'r', 'kind', 'passes', 'srcc', 'srcab', 'dpp', 'wide', 'lds_dma', 'tag', 'barrier_like')
    def __init__(self, text, tag=None):
        self.text = text.strip()
        self.tag = tag
        t = self.text.split(';')[0].strip()
        self.w = []; self.r = []; self.kind = 'other'; self.passes = 0; self.srcc = []; self.srcab = []
        self.dpp = False; self.wide = False; self.lds_dma = False; self.barrier_like = False
        if not t or t.endswith(':') or t.startswith('.'):
            self.op = ''; self.kind = 'label' if t.endswith(':') else 'none'
            return
        parts = t.split(None, 1)
        op = self.op = parts[0]
        rest = parts[1] if len(parts) > 1 else ''
        ops = []; depth = 0; cur = ''
        for ch in rest:
            if ch == '[': depth += 1
            if ch == ']': depth -= 1
            if ch == ',' and depth == 0: ops.append(cur.strip()); cur = ''
            else: cur += ch
        if cur.strip(): ops.append(cur.strip())
        mods = ''
        if ops:
            last = ops[-1].split(None, 1)
            ops[-1] = last[0]
            mods = last[1] if len(last) > 1 else ''
        R = lambda xs: [g for o in xs for g in regs_of(o)]
        base = re.sub(r'_(e32|e64|dpp|sdwa)$', '', op)
        if op.startswith('v_mfma'):
            self.kind = 'mfma'; self.w = R(ops[:1]); self.srcab = R(ops[1:3]); self.srcc = R(ops[3:4]); self.r = self.srcab + self.srcc
            self.passes = 8 if '32x32x16' in op else 4 if '16x16x32' in op else None
            assert self.passes
        elif op.startswith('v_'):
            self.kind = 'trans' if base in TRANS else 'valu'
            self.dpp = op.endswith('_dpp') or 'row_' in mods or 'quad_perm' in mods or 'wave_' in mods
            if base in ('v_swap_b32', 'v_permlane16_swap_b32', 'v_permlane32_swap_b32'):
                self.w = R(ops[:2]); self.r = R(ops[:2])
            elif base.startswith('v_cmp'):
                self.w = R(ops[:1]); self.r = R(ops[1:])
            elif base in ('v_add_co_u32', 'v_sub_co_u32', 'v_addc_co_u32', 'v_mad_u64_u32'):
                self.w = R(ops[:2]); self.r = R(ops[2:])
            else:
                self.w = R(ops[:1]); self.r = R(ops[1:])
                if base in ('v_fmac_f32', 'v_dot2c_f32_bf16', 'v_writelane_b32') or self.dpp: self.r += self.w
                if base == 'v_cndmask_b32' and len(ops) == 3: self.r += regs_of('vcc')
        elif op.startswith('ds_'):
            self.kind = 'ds'
            if op.startswith('ds_read') or op.startswith('ds_bpermute') or op.startswith('ds_swizzle') or op.startswith('ds_permute'):
                self.w = R(ops[:1]); self.r = R(ops[1:])
            else:
                self.r = R(ops)
        elif op.startswith('buffer_') or op.startswith('global_'):
            self.kind = 'vmem'
            if op in ('buffer_inv', 'buffer_wbl2'):
                pass
            elif ' lds' in (' ' + mods) or '_lds_' in op:
                self.lds_dma = True; self.r = R(ops) + [('s', 'm0')]
            elif '_load' in op:
                self.w = R(ops[:1]); self.r = R(ops[1:])
            elif '_atomic' in op:
                self.r = R(ops)
                if 'sc0' in mods: self.w = R(ops[:1])
            else:
                self.r = R(ops); self.wide = 'x4' in op or 'x3' in op
        elif op.startswith('s_load') or op in ('s_memtime', 's_memrealtime'):
            self.kind = 'smem'; self.w = R(ops[:1]); self.r = R(ops[1:])
        elif op == 's_waitcnt': self.kind = 'wait'
        elif op == 's_nop': self.kind = 'nop'
        elif op == 's_barrier': self.kind = 'barrier'
        elif op.startswith('s_cbranch') or op == 's_branch' or op == 's_endpgm': self.kind = 'branch'
        elif op.startswith('s_cmp') or op.startswith('s_bitcmp'): self.kind = 'salu'; self.r = R(ops)
        elif op in ('s_sleep', 's_setprio'): self.kind = 'salu'
        elif op.startswith('s_'):
            self.kind = 'salu'; self.w = R(ops[:1]); self.r = R(ops[1:])
            if 'saveexec' in op: self.w += regs_of('exec'); self.r += regs_of('exec')
            if op in ('s_addk_i32', 's_mulk_i32'): self.r += self.w
        else:
            raise ValueError('unknown instruction: ' + text)

def states(ins):
    if ins.kind == 'nop':
        return int(ins.text.split()[1], 0) + 1
    if ins.kind in ('label', 'none'): return 0
    return 1

def need_states(p, c):
    n = 0
    pw = set(p.w); cr = set(c.r); cw = set(c.w)
    pv = p.kind in ('valu', 'trans')
    cv = c.kind in ('valu', 'trans')
    if pv:
        vw = {x for x in pw if x[0] in 'va'}
        sw = {x for x in pw if x[0] == 's'}
        if c.kind == 'mfma' and vw & cr: n = max(n, 2)
        if cv and vw & cr:
            if c.dpp: n = max(n, 2)
            if 'permlane' in c.op: n = max(n, 2)
            if c.op.startswith('v_readlane') or c.op.startswith('v_readfirstlane'): n = max(n, 1)
            if p.kind == 'trans' and c.kind != 'trans': n = max(n, 1)
        if p.kind == 'trans' and c.kind == 'trans' and vw & cr: n = max(n, 1)
        if sw & cr:
            if cv: n = max(n, 4 if c.op.startswith(('v_readlane', 'v_writelane')) else 2)
            if c.kind == 'vmem': n = max(n, 5)
            if c.kind in ('salu', 'smem', 'branch'): n = max(n, 2)
        if sw and c.kind == 'branch' and 'vcc' in c.op and any(str(x[1]).startswith('vcc') for x in sw): n = max(n, 5)
    if p.kind == 'mfma':
        big = p.passes == 8
        if c.kind == 'mfma':
            if pw & set(c.srcab): n = max(n, 12 if big else 8)
            if pw & set(c.srcc):
                if not (set(c.srcc) == pw and c.passes == p.passes): n = max(n, 10 if big else 6)
            if pw & cw and not (set(c.srcc) == pw and c.passes == p.passes): n = max(n, 10 if big else 6)
        elif cv or c.kind in ('ds', 'vmem'):
            if pw & (cr | cw): n = max(n, 12 if big else 8)
        if cv and set(p.srcc) & cw: n = max(n, 7 if big else 3)
    if p.kind == 'salu' and ('s', 'm0') in pw and c.lds_dma: n = max(n, 1)
    if p.kind == 'vmem' and p.wide and (cv or c.kind in ('ds','vmem')) and ({x for x in p.r if x[0] in 'va'} & cw): n = max(n, 2)
    return n

class Prog:
    def __init__(self):
        self.ins = []
    def __call__(self, text, tag=None):
        for line in text.strip().split('\n'):
            if line.strip(): self.ins.append(Ins(line, tag))
    def extend(self, lst):
        for x in lst:
            if isinstance(x, Ins): self.ins.append(x)
            else: self(x)

def mk(text):
    return [Ins(l) for l in text.strip().split('\n') if l.strip()]

def finalize(ins):
    out = []
    vm = []
    lg = []
    smem_out = []
    for i in ins:
        if i.kind == 'wait':
            m = re.search(r'vmcnt\((\d+)\)', i.text)
            if m:
                k = int(m.group(1)); vm = vm[len(vm) - k:] if k < len(vm) and k > 0 else ([] if k == 0 else vm)
            m = re.search(r'lgkmcnt\((\d+)\)', i.text)
            if m:
                k = int(m.group(1))
                if k == 0: lg = []; smem_out = []
                elif not smem_out: lg = lg[len(lg) - k:] if k < len(lg) else lg
            out.append(i); continue
        if i.tag and isinstance(i.tag, tuple) and i.tag[0] == 'waitvm':
            idx = [k for k, (d, x) in enumerate(vm) if x.tag == ('tok', i.tag[1])]
            if idx:
                n = len(vm) - 1 - idx[-1]
                out.append(Ins(f's_waitcnt vmcnt({min(n, 63)})')); vm = vm[idx[-1] + 1:]
            continue
        touch = set(i.r) | set(i.w)
        wv = None; wl = None
        for k, (d, x) in enumerate(vm):
            if d & touch: wv = k
        for k, (d, x) in enumerate(lg):
            if d & touch: wl = k
        sm = any(d & touch for d in smem_out)
        s = ''
        if wv is not None:
            n = len(vm) - 1 - wv; s += f' vmcnt({min(n, 63)})'; vm = vm[wv + 1:]
        if sm or (wl is not None and smem_out):
            s += ' lgkmcnt(0)'; lg = []; smem_out = []
        elif wl is not None:
            n = len(lg) - 1 - wl; s += f' lgkmcnt({min(n, 15)})'; lg = lg[wl + 1:]
        if s: out.append(Ins('s_waitcnt' + s))
        out.append(i)
        if i.kind == 'vmem' and i.op not in ('buffer_inv',) : vm.append((set(i.w), i))
        if i.kind == 'vmem' and i.op == 'buffer_inv': vm.append((set(), i))
        if i.kind == 'ds': lg.append((set(i.w), i))
        if i.kind == 'smem': smem_out.append(set(i.w))
    res = []
    for i in out:
        if i.kind in ('label', 'none'):
            res.append(i); continue
        need = 0; dist = 0
        for p in reversed(res):
            if dist >= 20: break
            n = need_states(p, i)
            if n > dist: need = max(need, n - dist)
            dist += states(p)
        while need > 0:
            k = min(need, 16); res.append(Ins(f's_nop {k - 1}')); need -= k
        res.append(i)
    return res

def text(ins):
    o = []
    for i in ins:
        t = i.text
        o.append(t if i.kind == 'label' or t.startswith('.') else '    ' + t)
    return '\n'.join(o) + '\n'

def interleave(main, fillers, rate):
    out = []; q = []; fi = 0
    fillers = sorted(fillers, key=lambda x: x[0])
    credit = 0.0
    for g, grp in enumerate(main):
        out += grp
        while fi < len(fillers) and fillers[fi][0] <= g:
            q += fillers[fi][1]; fi += 1
        credit += rate(g) if callable(rate) else rate
        while q and credit >= cost(q[0]):
            credit -= cost(q[0]); out.append(q.pop(0))
        if not q: credit = 0.0
    while fi < len(fillers):
        q += fillers[fi][1]; fi += 1
    out += q
    return out

def cost(i):
    if i.kind == 'trans' or 'permlane' in i.op or i.op.startswith('v_swap'): return 2.0
    if i.kind in ('label', 'none'): return 0.0
    return 1.0
```

```python
import numpy as np
L, D, NM, F = 2048, 640, 128, 1728
FLAGS = 0x0
MODP = 0x40000
VV   = 0x50000
GB   = 0x52000
XP   = 0x100000
X2   = 0x600000
W1F  = 0x900000
W2F  = 0xC00000
H1   = 0x1000000
WS_END = 0x1700000
LOG2E = 1.4426950408889634
LN2 = 0.6931471805599453

def t_of_sigma(s):
    s = np.asarray(s)
    return 256*(s>>8) + 32*(s&7) + 4*((s>>3)&7) + ((s>>6)&3)

def f_of_slot(ks, q, j):
    e, u = divmod(ks, 7)
    half = j >> 2
    if u < 6:
        blk = 2*e + (1 if u >= 3 else 0); ft = 2*(u % 3) + half
    else:
        blk = 2*e + half; ft = 6
    loc = 16*ft + 4*q + (j & 3)
    return 108*blk + loc if loc < 108 else -1

def n_of_row(cb80, nt, nr):
    qq, r = nr >> 2, nr & 3
    if nt < 4: return 80*cb80 + 32*(nt >> 1) + 8*qq + 4*(nt & 1) + r
    return 80*cb80 + 64 + 4*qq + r

def bf2f(u): return (np.asarray(u).astype(np.uint32) << 16).view(np.float32)
def f2bf(f):
    u = np.ascontiguousarray(f, dtype=np.float32).view(np.uint32)
    return ((u + 0x7fff + ((u >> 16) & 1)) >> 16).astype(np.uint16)
def rbf(f): return bf2f(f2bf(f))
```

```python
import sys
from asmlib import *
from layout import *
import struct
def fhex(x): return '0x%08x' % struct.unpack('<I', struct.pack('<f', x))[0]

KNAME = 'adaLN_cond__ssm_conv_s4d__dense_activation_silu__prompt'
sX, sLA, sAI, sCR, sCI, sDT, sDS = 4, 6, 8, 10, 12, 14, 16
sW1, sW2, sC, sWM, sOUT, sDBG, sWS = 20, 22, 24, 26, 28, 30, 32
WS = 's[36:39]'
RA, RB, RC, RD, RE, RF = 40, 44, 48, 52, 56, 96
sWAVE, sXCD, sI = 60, 61, 62
def R(b): return f's[{b}:{b+3}]'
def srd(p, b, ptr, size):
    p(f"""s_mov_b32 s{b}, s{ptr}
    s_mov_b32 s{b+1}, s{ptr+1}
    s_mov_b32 s{b+2}, {size}
    s_mov_b32 s{b+3}, 0x20000""")
def vr(a, n): return f'v[{a}:{a+n-1}]' if n > 1 else f'v{a}'
def ar(a, n): return f'a[{a}:{a+n-1}]' if n > 1 else f'a{a}'

class Cfg:
    fused = False
    st = ''
    ld = ''
cfg = Cfg()

def preamble(p, lab):
    p(f"""s_load_dwordx16 s[4:19], s[0:1], 0
    s_load_dwordx8 s[20:27], s[0:1], 64
    s_load_dwordx4 s[28:31], s[0:1], 96
    s_load_dwordx2 s[32:33], s[0:1], 112
    s_cmp_ge_u32 s2, 256
    s_cbranch_scc1 {lab}_end
    v_and_b32 v1, 63, v0
    v_lshrrev_b32 v2, 6, v0
    s_and_b32 s{sXCD}, s2, 7
    s_lshr_b32 s{sI}, s2, 3
    v_readfirstlane_b32 s{sWAVE}, v2
    s_waitcnt lgkmcnt(0)""")
    srd(p, 36, sWS, hex(WS_END))

def rbf1(p, d, s):
    p(f"v_cvt_pk_bf16_f32 v{d}, v{s}, v{s}\nv_lshlrev_b32 v{d}, 16, v{d}")

def phase1_loads(p):
    srd(p, RA, sX, L*D*2); srd(p, RB, sWM, D*6*D*2); srd(p, RC, sC, D*2)
    p(f"""s_lshr_b32 s63, s2, 5
    s_bfe_u32 s64, s2, 0x30002
    s_and_b32 s65, s2, 3
    s_lshl_b32 s66, s63, 8
    s_lshl_b32 s67, s64, 2
    s_add_u32 s66, s66, s67
    s_add_u32 s66, s66, s65
    s_mul_i32 s66, s66, 1280
    v_and_b32 v3, 7, v0
    v_lshrrev_b32 v4, 3, v0
    v_mul_u32_u24 v5, 40960, v3
    v_lshl_add_u32 v5, v4, 3, v5""")
    for k in range(5):
        p(f"buffer_load_dwordx2 v[{10+4*k}:{11+4*k}], v5, {R(RA)}, s66 offen offset:{256*k}")
    p(f"""s_lshl_b32 s64, s64, 12
    s_lshl_b32 s67, s65, 10
    s_lshl_b32 s63, s63, 7
    s_add_u32 s63, s63, s64
    s_add_u32 s63, s63, s67
    s_add_u32 s63, s63, {hex(XP)}
    v_lshlrev_b32 v6, 15, v4
    v_lshl_add_u32 v6, v3, 4, v6""")
    p(f"""s_lshr_b32 s64, s2, 2
    s_min_u32 s67, s64, 59
    s_mul_i32 s68, s65, 160
    s_mul_i32 s69, s{sWAVE}, 40
    s_add_u32 s68, s68, s69
    s_mul_i32 s69, s68, 7680
    s_lshl_b32 s70, s67, 7
    s_add_u32 s69, s69, s70
    s_lshl_b32 s68, s68, 1
    v_lshrrev_b32 v7, 3, v1
    v_and_b32 v90, 7, v1
    v_mul_u32_u24 v91, 7680, v7
    v_lshl_add_u32 v91, v90, 4, v91
    v_lshlrev_b32 v7, 1, v7""")
    for i in range(5):
        p(f"buffer_load_ushort v{68+i}, v7, {R(RC)}, s68 offen offset:{16*i}")
    for i in range(5):
        p(f"buffer_load_dwordx4 v[{48+4*i}:{51+4*i}], v91, {R(RB)}, s69 offen")
        if i < 4: p("s_add_u32 s69, s69, 61440")
    p(f"""s_mul_i32 s68, s65, 15360
    s_lshl_b32 s70, s67, 8
    s_add_u32 s68, s68, s70
    s_add_u32 s68, s68, {hex(MODP)}
    s_cmp_lt_u32 s64, 60
    s_cselect_b32 s68, s68, 0x7f000000""")

def phase1_compute(p, ldsb=0):
    for k in range(5):
        for h in range(2):
            s = 10+4*k+h; d = 28+4*k+2*h
            p(f"v_lshlrev_b32 v{d}, 16, v{s}\nv_and_b32 v{d+1}, 0xffff0000, v{s}")
    p("v_pk_add_f32 v[82:83], v[28:29], v[30:31]\nv_pk_mul_f32 v[84:85], v[28:29], v[28:29]\nv_pk_fma_f32 v[84:85], v[30:31], v[30:31], v[84:85]")
    for k in range(2, 10):
        a = 28+2*k
        p(f"v_pk_add_f32 v[82:83], v[82:83], v[{a}:{a+1}]\nv_pk_fma_f32 v[84:85], v[{a}:{a+1}], v[{a}:{a+1}], v[84:85]")
    p(f"""v_add_f32 v82, v82, v83
    v_add_f32 v84, v84, v85
    v_add_f32_dpp v82, v82, v82 row_ror:8 row_mask:0xf bank_mask:0xf
    v_add_f32_dpp v84, v84, v84 row_ror:8 row_mask:0xf bank_mask:0xf
    v_permlane16_swap_b32 v82, v84
    v_add_f32 v82, v82, v84
    v_mov_b32 v84, v82
    v_permlane32_swap_b32 v82, v84
    v_add_f32 v82, v82, v84
    v_bfe_u32 v86, v1, 4, 1
    v_lshl_add_u32 v86, v3, 1, v86
    v_lshlrev_b32 v86, 4, v86
    s_lshl_b32 s70, s{sWAVE}, 2
    s_add_u32 s70, s70, {ldsb}
    v_add_u32 v86, s70, v86
    ds_write_b32 v86, v82""")
    for i in range(5):
        c = 68+i
        p(f"""v_lshlrev_b32 v{c}, 16, v{c}
        v_mul_f32 v87, {fhex(-LOG2E)}, v{c}
        v_exp_f32 v87, v87
        v_add_f32 v87, 1.0, v87
        v_rcp_f32 v87, v87
        v_mul_f32 v{c}, v{c}, v87""")
        rbf1(p, c, c)
    for i in range(5):
        p(f"v_mov_b32 v88, v{68+i}")
        for h in range(4):
            s = 48+4*i+h
            p(f"v_lshlrev_b32 v92, 16, v{s}\nv_and_b32 v93, 0xffff0000, v{s}")
            a = 74+2*h
            if i == 0: p(f"v_pk_mul_f32 v[{a}:{a+1}], v[92:93], v[88:89] op_sel_hi:[1,0]")
            else: p(f"v_pk_fma_f32 v[{a}:{a+1}], v[92:93], v[88:89], v[{a}:{a+1}] op_sel_hi:[1,0,1]")
    for k in range(4): p(f"v_permlane32_swap_b32 v{74+k}, v{78+k}")
    for k in range(4): p(f"v_add_f32 v{74+k}, v{74+k}, v{78+k}")
    for k in range(2): p(f"v_permlane16_swap_b32 v{74+k}, v{76+k}")
    for k in range(2): p(f"v_add_f32 v{74+k}, v{74+k}, v{76+k}")
    p(f"""v_add_f32_dpp v76, v74, v74 row_ror:8 row_mask:0xf bank_mask:0x3
    v_add_f32_dpp v76, v75, v75 row_ror:8 row_mask:0xf bank_mask:0xc
    v_lshrrev_b32 v87, 3, v1
    v_lshl_add_u32 v87, v90, 3, v87
    v_lshlrev_b32 v87, 4, v87
    v_add_u32 v87, s70, v87
    ds_write_b32 v87, v76 offset:256
    v_lshlrev_b32 v86, 5, v3
    v_lshlrev_b32 v87, 4, v1
    s_waitcnt lgkmcnt(0)
    s_barrier
    ds_read_b128 v[48:51], v86 offset:{ldsb}
    ds_read_b128 v[52:55], v86 offset:{ldsb+16}
    ds_read_b128 v[56:59], v87 offset:{ldsb+256}
    v_add_f32 v48, v48, v49
    v_add_f32 v50, v50, v51
    v_add_f32 v52, v52, v53
    v_add_f32 v54, v54, v55
    v_add_f32 v48, v48, v50
    v_add_f32 v52, v52, v54
    v_mul_f32 v48, {fhex(1/640)}, v48
    v_mul_f32 v52, {fhex(1/640)}, v52
    v_fma_f32 v52, -v48, v48, v52
    v_max_f32 v52, 0, v52""")
    rbf1(p, 52, 52)
    p(f"v_add_f32 v52, {fhex(1e-5)}, v52")
    rbf1(p, 52, 52)
    p("v_sqrt_f32 v52, v52")
    rbf1(p, 48, 48)
    rbf1(p, 52, 52)
    p("""v_rcp_f32 v52, v52
    v_add_f32 v56, v56, v57
    v_add_f32 v58, v58, v59
    v_mul_f32 v54, -v48, v52
    v_add_f32 v56, v56, v58
    v_lshlrev_b32 v87, 2, v1""")
    for k in range(5):
        for h in range(2):
            a = 28+4*k+2*h
            p(f"v_pk_fma_f32 v[{a}:{a+1}], v[{a}:{a+1}], v[52:53], v[54:55] op_sel_hi:[1,0,0]")
            p(f"v_cvt_pk_bf16_f32 v{8+4*k+h}, v{a}, v{a+1}")
        p(f"buffer_store_dwordx4 v[{8+4*k}:{11+4*k}], v6, {WS}, s63 offen {cfg.st}")
        if k < 4: p("s_add_u32 s63, s63, 0x100000")
    p(f"""s_cmp_eq_u32 s{sWAVE}, 0
    s_cselect_b32 s68, s68, 0x7f000000
    buffer_store_dword v56, v87, {WS}, s68 offen {cfg.st}""")

STG = 33792
FT0 = 4*STG
FTS = 4224
HT, XT, EXB = 0, 18432, 36864
def kgen_loads(p):
    srd(p, RA, sLA, D*NM*2); srd(p, RB, sAI, D*NM*2); srd(p, RC, sCR, D*NM*2); srd(p, RD, sCI, D*NM*2)
    srd(p, RE, sDT, D*2); srd(p, RF, sDS, D*2)
    p(f"""s_lshl_b32 s72, s71, 2
    s_add_u32 s72, s72, s{sWAVE}
    s_lshl_b32 s73, s72, 8
    s_lshl_b32 s72, s72, 1
    v_lshlrev_b32 v100, 2, v1
    v_mov_b32 v101, 0
    buffer_load_ushort v106, v101, {R(RE)}, s72 offen
    buffer_load_dword v102, v100, {R(RA)}, s73 offen
    buffer_load_dword v103, v100, {R(RB)}, s73 offen
    buffer_load_dword v104, v100, {R(RC)}, s73 offen
    buffer_load_dword v105, v100, {R(RD)}, s73 offen
    buffer_load_ushort v107, v101, {R(RF)}, s72 offen""")

def cmul(d, x, w, t):
    return [f"v_pk_mul_f32 v[{t}:{t+1}], v[{x}:{x+1}], v[{w}:{w+1}] op_sel_hi:[1,0]",
            f"v_pk_fma_f32 v[{d}:{d+1}], v[{x}:{x+1}], v[{w}:{w+1}], v[{t}:{t+1}] op_sel:[1,1,0] op_sel_hi:[0,1,1] neg_lo:[1,0,0]"]
sDK = 74
def kgen_compute(p):
    p(f"""v_lshlrev_b32 v106, 16, v106
    v_mul_f32 v106, {fhex(LOG2E)}, v106
    v_exp_f32 v106, v106
    v_lshlrev_b32 v107, 16, v107""")
    rbf1(p, 106, 106)
    p(f"v_readfirstlane_b32 s{sDK}, v107")
    B = [110, 140]
    W1_, W8_, W256_, E_, T_, G_, FC_, T2_ = 0, 2, 4, 6, 8, 10, 20, 22
    A2, B2, TA, TB = 24, 25, 26, 27
    def both(f):
        a, b = f(0), f(1)
        for x, y in zip(a, b): p(x); p(y)
    def unp(d, s, mu): return f"v_lshlrev_b32 v{d}, 16, v{s}" if mu == 0 else f"v_and_b32 v{d}, 0xffff0000, v{s}"
    both(lambda m: [unp(B[m]+A2, 102, m), f"v_mul_f32 v{B[m]+A2}, {fhex(LOG2E)}, v{B[m]+A2}", f"v_exp_f32 v{B[m]+A2}, v{B[m]+A2}",
                    unp(B[m]+B2, 103, m), f"v_cvt_pk_bf16_f32 v{B[m]+A2}, v{B[m]+A2}, v{B[m]+A2}", f"v_mul_f32 v{B[m]+B2}, v{B[m]+B2}, v106",
                    f"v_lshlrev_b32 v{B[m]+A2}, 16, v{B[m]+A2}", f"v_mul_f32 v{B[m]+B2}, 0.15915494, v{B[m]+B2}",
                    f"v_mul_f32 v{B[m]+A2}, v{B[m]+A2}, v106", unp(B[m]+G_, 104, m), f"v_mul_f32 v{B[m]+A2}, {fhex(-LOG2E)}, v{B[m]+A2}",
                    unp(B[m]+G_+1, 105, m)])
    for W, pw in ((W8_, 8.0), (W1_, 1.0), (W256_, 256.0)):
        both(lambda m: [f"v_mul_f32 v{B[m]+TB}, {fhex(pw)}, v{B[m]+B2}", f"v_mul_f32 v{B[m]+TA}, {fhex(pw)}, v{B[m]+A2}",
                        f"v_rndne_f32 v{B[m]+T_}, v{B[m]+TB}", f"v_exp_f32 v{B[m]+TA}, v{B[m]+TA}",
                        f"v_sub_f32 v{B[m]+TB}, v{B[m]+TB}, v{B[m]+T_}",
                        f"v_cos_f32 v{B[m]+W}, v{B[m]+TB}", f"v_sin_f32 v{B[m]+W+1}, v{B[m]+TB}",
                        f"v_mul_f32 v{B[m]+W}, v{B[m]+W}, v{B[m]+TA}", f"v_mul_f32 v{B[m]+W+1}, v{B[m]+W+1}, v{B[m]+TA}"])
    p(f"""s_mul_i32 s75, s{sWAVE}, {STG}
    v_lshlrev_b32 v108, 3, v1
    v_add_u32 v108, s75, v108""")
    rot = [0]
    def wr(rows, off, neg):
        c = 170 + 6*int(neg) + 2*(rot[0] % 3); rot[0] += 1
        o = [f"v_cvt_pk_bf16_f32 v{c+m}, v{B[m]+off}, {'-' if neg else ''}v{B[m]+off+1}" for m in range(2)]
        o += [f"ds_write_b64 v108, v[{c}:{c+1}] offset:{528*r}" for r in rows]
        return o
    POS = [[0,1,2,3,4,5,6,7,512,516,520,1024,1032,1280,1288],
           [256,256,258,260,260,260,262,264,768,772,776,1536,1544,1792,1800]]
    def frows(pos): return [32 + 8*(u >> 2) + 4*hd + (u & 3) for hd in range(2) for u, q in enumerate(POS[hd]) if q == pos]
    es = ["v_mov_b32 v182, 0x3f80", "v_mov_b32 v183, 0x3f80", "ds_write_b64 v108, v[182:183]"]
    es_steps = []
    es_steps.append(wr([1], W8_, False))
    src = W8_
    for j in range(2, 32):
        a = cmul(B[0]+E_, B[0]+src, B[0]+W8_, B[0]+T_); b = cmul(B[1]+E_, B[1]+src, B[1]+W8_, B[1]+T_)
        es_steps.append([a[0], b[0], a[1], b[1]] + wr([j], E_, False)); src = E_
    fs_steps = [wr(frows(0), G_, True)]
    src = G_
    for b_ in range(1, 9):
        dst = G_ + b_ if b_ % 2 == 0 else FC_
        a = cmul(B[0]+dst, B[0]+src, B[0]+W1_, B[0]+T2_); b = cmul(B[1]+dst, B[1]+src, B[1]+W1_, B[1]+T2_)
        fs_steps.append([a[0], b[0], a[1], b[1]] + (wr(frows(b_), dst, True) if b_ < 8 else [])); src = dst
    for base, es_ in ((256, (0,2,4,6,8)), (512, (0,4,8)), (768, (0,4,8)), (1024, (0,8)), (1280, (0,8)), (1536, (0,8)), (1792, (0,8))):
        for e in es_:
            g = G_ + e
            a = cmul(B[0]+g, B[0]+g, B[0]+W256_, B[0]+T2_); b = cmul(B[1]+g, B[1]+g, B[1]+W256_, B[1]+T2_)
            fs_steps.append([a[0], b[0], a[1], b[1]] + wr(frows(base+e), g, True))
    for x in es: p(x)
    n = max(len(es_steps), len(fs_steps))
    for k in range(n):
        a = es_steps[k] if k < len(es_steps) else []
        b = fs_steps[k] if k < len(fs_steps) else []
        m = max(len(a), len(b))
        for z in range(m):
            if z < len(a): p(a[z])
            if z < len(b): p(b[z])
    p(f"""v_and_b32 v109, 31, v1
    v_lshrrev_b32 v110, 5, v1
    v_mul_u32_u24 v111, 528, v109
    v_lshl_add_u32 v111, v110, 4, v111
    v_add_u32 v111, s75, v111
    s_mul_i32 s76, s{sWAVE}, {FTS}
    s_add_u32 s76, s76, {FT0}
    v_lshlrev_b32 v112, 4, v109
    v_add_u32 v112, s76, v112
    v_lshl_add_u32 v113, v110, 10, v112
    v_lshl_add_u32 v112, v110, 9, v112
    v_add_f32 v106, v106, v106
    v_and_b32 v114, 15, v1
    v_lshl_add_u32 v114, v114, 2, s76
    v_mov_b32 v115, 0
    ds_write_b32 v114, v115""")
    for ks in range(16):
        p(f"ds_read_b128 {ar(8*ks, 4)}, v111 offset:{32*528+32*ks}\nds_read_b128 {ar(8*ks+4, 4)}, v111 offset:{32*ks}")
        if ks >= 3:
            k = ks-3
            p(f"v_mfma_f32_32x32x16_bf16 v[116:131], {ar(8*k,4)}, {ar(8*k+4,4)}, {'0' if k == 0 else 'v[116:131]'}")
    for k in range(13, 16):
        p(f"v_mfma_f32_32x32x16_bf16 v[116:131], {ar(8*k,4)}, {ar(8*k+4,4)}, v[116:131]")
    p("s_mov_b32 s78, 0xaaaaaaaa\ns_mov_b32 s79, 0xaaaaaaaa")
    for u in range(0, 16, 2):
        p(f"v_pk_mul_f32 v[{116+u}:{117+u}], v[{116+u}:{117+u}], v[106:107] op_sel_hi:[1,0]")
    K = lambda u: f"v{116+u}"
    for z in range(4): p(f"v_cvt_pk_bf16_f32 v{132+z}, {K(2*z)}, {K(2*z+1)}")
    p("ds_write_b128 v112, v[132:135] offset:64")
    for z, (a, b) in enumerate(((8,8),(8,9),(9,9),(10,10))): p(f"v_cvt_pk_bf16_f32 v{136+z}, {K(a)}, {K(b)}")
    p("ds_write_b128 v112, v[136:139] offset:1088")
    for sl, (k0, o) in enumerate(((11, 2048+64), (13, 2560+64))):
        q = 140+4*sl
        p(f"""v_cndmask_b32 v148, {K(k0)}, {K(k0+1)}, s[78:79]
        v_cvt_pk_bf16_f32 v{q}, {K(k0)}, {K(k0)}
        v_cvt_pk_bf16_f32 v{q+1}, {K(k0)}, {K(k0)}
        v_cvt_pk_bf16_f32 v{q+2}, v148, {K(k0+1)}
        v_cvt_pk_bf16_f32 v{q+3}, {K(k0+1)}, {K(k0+1)}
        ds_write_b128 v113, v[{q}:{q+3}] offset:{o}""")

sA01, sGA = 80, 84
def conv_loads(p):
    p(f"""v_lshlrev_b32 v3, 4, v0
    s_lshl_b32 s77, s71, 15
    s_add_u32 s77, s77, {hex(XP)}
    v_lshrrev_b32 v4, 4, v1
    v_bfe_u32 v5, v1, 2, 2
    v_and_b32 v6, 3, v1
    v_mul_u32_u24 v4, 2560, v4
    v_mul_u32_u24 v5, 15360, v5
    v_lshl_add_u32 v4, v6, 2, v4
    v_add_u32 v4, v4, v5
    s_lshl_b32 s85, s71, 4
    s_add_u32 s85, s85, {hex(MODP)}
    buffer_load_dword v7, v4, {WS}, s85 offen {cfg.ld}""")
    for j in range(8):
        p(f"buffer_load_dwordx4 v[{8+4*j}:{11+4*j}], v3, {WS}, s77 offen {cfg.ld}")
        if j < 7: p("s_add_u32 s77, s77, 4096")

def conv_prep(p):
    p(f"""v_lshrrev_b32 v4, 4, v1
    v_cmp_eq_u32 vcc, 1, v4
    v_cndmask_b32 v4, 0, 1.0, vcc
    v_add_f32_dpp v7, v7, v7 row_ror:4 row_mask:0xf bank_mask:0xf
    v_add_f32_dpp v7, v7, v7 row_ror:8 row_mask:0xf bank_mask:0xf""")
    rbf1(p, 7, 7)
    p("v_add_f32 v7, v7, v4")
    rbf1(p, 7, 7)
    p(f"s_add_u32 s86, s{sWAVE}, 32")
    for ch in range(4): p(f"v_readlane_b32 s{sA01+ch}, v7, {16+ch}")
    for ch in range(4): p(f"v_readlane_b32 s{88+ch}, v7, {ch}")
    p(f"v_readlane_b32 s{sGA}, v7, s86")
    for ch in range(4): p(f"v_mov_b32 v{40+ch}, s{88+ch}")
    p(f"""s_mul_i32 s86, s{sWAVE}, 1152
    v_lshlrev_b32 v5, 4, v1
    v_add_u32 v5, s86, v5
    v_mov_b32 v44, 0
    v_mov_b32 v45, 0
    v_mov_b32 v46, 0
    v_mov_b32 v47, 0
    s_mov_b64 exec, 0x7f""")
    for ch in range(4): p(f"ds_write_b128 v5, v[44:47] offset:{HT+4608*ch}")
    p("s_mov_b64 exec, -1\ns_mov_b32 s86, 0x05040100\ns_mov_b32 s87, 0x07060302")
    Hh = 48
    for j in range(8):
        for h in range(2):
            s = 8+4*j+h; d = Hh+4*j+2*h
            p(f"v_lshlrev_b32 v{d}, 16, v{s}\nv_and_b32 v{d+1}, 0xffff0000, v{s}")
            p(f"v_pk_fma_f32 v[{d}:{d+1}], v[{d}:{d+1}], s[{sA01+2*h}:{sA01+2*h+1}], v[{40+2*h}:{41+2*h}]")
    for ch in range(4):
        q = 80+4*ch
        for z in range(4): p(f"v_cvt_pk_bf16_f32 v{q+z}, v{Hh+8*z+ch}, v{Hh+8*z+4+ch}")
        p(f"ds_write_b128 v5, v[{q}:{q+3}] offset:{HT+4608*ch+112}")
    for ch in range(4):
        q = 96+4*ch
        for z in range(4):
            p(f"v_perm_b32 v{q+z}, v{8+8*z+4+2+(ch>>1)}, v{8+8*z+2+(ch>>1)}, s{86+(ch&1)}")
        p(f"ds_write_b128 v5, v[{q}:{q+3}] offset:{XT+4608*ch+112}")

vAA, vBA, vHA, vEA, vI1, vI2, vZ = 8, 9, 10, 11, 12, 13, 14
def conv_addr(p):
    p(f"""v_lshrrev_b32 v20, 5, v1
    v_bfe_u32 v21, v1, 4, 1
    v_bfe_u32 v22, v1, 2, 2
    v_and_b32 v23, 1, v1
    v_bfe_u32 v24, v1, 1, 1
    v_and_b32 v25, 7, v1
    v_bfe_u32 v26, v1, 3, 1
    s_mul_i32 s76, s{sWAVE}, {FTS}
    s_add_u32 s76, s76, {FT0+96}
    v_lshlrev_b32 v27, 5, v23
    v_lshl_add_u32 v27, v21, 4, v27
    v_lshl_add_u32 v27, v24, 3, v27
    v_lshlrev_b32 v28, 6, v20
    v_lshl_add_u32 v28, v22, 3, v28
    v_sub_u32 v27, v27, v28
    v_add_u32 v{vAA}, s76, v27
    s_mul_i32 s76, s{sWAVE}, 4608
    v_lshl_add_u32 v27, v26, 1, v21
    v_mul_u32_u24 v27, 1152, v27
    v_add_u32 v28, v25, v20
    v_lshl_add_u32 v27, v28, 4, v27
    v_add_u32 v{vBA}, s76, v27
    v_lshrrev_b32 v27, 3, v1
    v_lshlrev_b32 v27, 1, v27
    v_lshl_add_u32 v27, v25, 4, v27
    s_add_u32 s76, s76, 112
    v_add_u32 v{vHA}, s76, v27
    v_and_b32 v27, 15, v1
    v_lshlrev_b32 v27, 4, v27
    v_lshl_add_u32 v27, v20, 8, v27
    v_lshl_add_u32 v27, v21, 3, v27
    s_lshl_b32 s76, s{sWAVE}, 1
    s_add_u32 s76, s76, {EXB}
    v_add_u32 v{vEA}, s76, v27
    v_add_u32 v27, 7, v1
    v_and_b32 v27, 7, v27
    v_lshl_add_u32 v27, v26, 3, v27
    v_add_u32 v27, 48, v27
    v_subrev_u32 v28, 16, v1
    v_cmp_gt_u32 vcc, 16, v1
    v_cndmask_b32 v27, v28, v27, vcc
    v_lshlrev_b32 v{vI1}, 2, v27
    v_or_b32 v{vI2}, 32, v{vI1}
    v_mov_b32 v{vZ}, 0
    s_mov_b32 s78, 0
    s_mov_b32 s79, 0x80800000""")

def conv_main(p):
    Dr = lambda X: 128+16*X
    Aa = lambda s: 128+4*s
    Ba = lambda w: 4*(w+3)
    def loads(X):
        o = []
        for z in range(4):
            s = 4*X+z; w = 4*X-z
            o += mk(f"ds_read_b128 {ar(Ba(w),4)}, v{vBA} offset:{32*(w+3)}")
            o += mk(f"ds_read_b64_tr_b16 {ar(Aa(s),2)}, v{vAA} offset:{128*s+32}\nds_read_b64_tr_b16 {ar(Aa(s)+2,2)}, v{vAA} offset:{128*s}")
        return o
    def post(X):
        r = Dr(X); T = 16+24*(X & 1)
        pv = (lambda k: f"v{Dr(X-1)+k}") if X else (lambda k: f"v{vZ}")
        o = []
        for c in range(4):
            o += mk(f"ds_read_u16_d16_hi v{T+c}, v{vHA} offset:{HT+1152*c+128*X}\nds_read_u16_d16_hi v{T+4+c}, v{vHA} offset:{XT+1152*c+128*X}")
        for a in (7,6,5,4,3,2,1,0): o += mk(f"v_permlane16_swap_b32 v{r+a}, v{r+a+8}")
        o += mk(f"v_cndmask_b32 v{T+8}, v{r+15}, {pv(15)}, s[78:79]\nds_bpermute_b32 v{T+8}, v{vI1}, v{T+8}")
        for a in (7,6): o += mk(f"v_add_f32 v{r+a}, v{r+a}, v{r+a+7}")
        o += mk(f"""v_cndmask_b32 v{T+9}, v{r+6}, {pv(6)}, s[78:79]
        v_cndmask_b32 v{T+10}, v{r+7}, {pv(7)}, s[78:79]
        ds_bpermute_b32 v{T+9}, v{vI2}, v{T+9}
        ds_bpermute_b32 v{T+10}, v{vI2}, v{T+10}""")
        for a in (5,4,3,2,1): o += mk(f"v_add_f32 v{r+a}, v{r+a}, v{r+a+7}")
        Y = T+12
        m = "row_ror:8 row_mask:0xf bank_mask:"
        o += mk(f"""v_add_f32 v{r}, v{r}, v{T+8}
        v_add_f32_dpp v{Y+3}, v{r+1}, v{r+3} {m}0xf
        v_add_f32 v{Y+1}, v{r+1}, v{T+10}
        v_add_f32 v{Y}, v{r}, v{T+9}
        v_add_f32_dpp v{Y+2}, v{r}, v{r+2} {m}0xf
        v_add_f32_dpp v{Y+3}, v{r+7}, v{r+5} {m}0xc
        v_add_f32_dpp v{Y+1}, v{r+5}, v{r+3} {m}0xc
        v_add_f32_dpp v{Y}, v{r+4}, v{r+2} {m}0xc
        v_add_f32_dpp v{Y+2}, v{r+6}, v{r+4} {m}0xc""")
        for c in (3,1,0,2): o += mk(f"v_fmac_f32 v{Y+c}, s{sDK}, v{T+c}")
        for c in (3,1,0,2): o += mk(f"v_fmac_f32 v{T+4+c}, s{sGA}, v{Y+c}")
        o += mk(f"""v_cvt_pk_bf16_f32 v{T+16}, v{T+4}, v{T+5}
        v_cvt_pk_bf16_f32 v{T+17}, v{T+6}, v{T+7}
        ds_write_b16 v{vEA}, v{T+16} offset:{2048*X}
        ds_write_b16_d16_hi v{vEA}, v{T+16} offset:{2048*X+512}
        ds_write_b16 v{vEA}, v{T+17} offset:{2048*X+1024}
        ds_write_b16_d16_hi v{vEA}, v{T+17} offset:{2048*X+1536}""")
        return o
    p.extend(loads(0))
    main = []; fill = []
    for X in range(8):
        if X < 7: fill.append((len(main), loads(X+1)))
        for s in range(4*X+4):
            c = '0' if s == 0 else vr(Dr(X), 16)
            main.append(mk(f"v_mfma_f32_32x32x16_bf16 {vr(Dr(X),16)}, {ar(Aa(s),4)}, {ar(Ba(4*X-s),4)}, {c}"))
        fill.append((len(main)+1, post(X)))
    out = []; q = []; credit = 0
    pend = sorted(fill, key=lambda x: x[0]); g0 = 0
    tile_start = {}
    k = 0
    for X in range(8):
        tile_start[k] = X; k += 4*X+4
    lq = []
    for g, grp in enumerate(main):
        if g in tile_start:
            out += lq; lq = []
        out += grp
        for (st, lst) in pend:
            if st == g:
                if lst[0].op == 'ds_read_b128': lq = list(lst)
                else: q += lst
        credit += 5.0
        while lq and credit >= 1: out.append(lq.pop(0)); credit -= 1
        while q and credit >= cost(q[0]): credit -= cost(q[0]); out.append(q.pop(0))
        if not q and not lq: credit = 0
    for (st, lst) in pend:
        if st >= len(main): q += lst
    out += q
    p.extend(out)

def conv_store(p):
    p(f"""v_lshlrev_b32 v3, 4, v0
    s_lshl_b32 s77, s71, 14
    s_add_u32 s77, s77, {hex(X2)}
    s_waitcnt lgkmcnt(0)
    s_barrier""")
    for k in range(4): p(f"ds_read_b128 v[{64+4*k}:{67+4*k}], v3 offset:{EXB+4096*k}")
    for k in range(4):
        p(f"buffer_store_dwordx4 v[{64+4*k}:{67+4*k}], v3, {WS}, s77 offen {cfg.st}")
        if k < 3: p("s_add_u32 s77, s77, 4096")

def w1h_loads(p):
    srd(p, RA, sW1, D*F*2)
    p(f"""v_and_b32 v3, 3, v0
    v_lshrrev_b32 v4, 2, v0
    s_lshl_b32 s72, s71, 2
    v_add_u32 v5, s72, v3
    v_mul_u32_u24 v6, 4682, v5
    v_lshrrev_b32 v6, 16, v6
    v_mul_u32_u24 v7, 14, v6
    v_sub_u32 v7, v5, v7
    v_cmp_eq_u32 s[72:73], 13, v7
    v_lshlrev_b32 v5, 4, v5
    v_lshlrev_b32 v6, 3, v6
    v_sub_u32 v5, v5, v6
    v_mul_u32_u24 v6, 34560, v4
    v_add_u32 v5, v5, v6
    s_mov_b32 s74, 0""")
    for i in range(10):
        p(f"buffer_load_dwordx4 v[{8+4*i}:{11+4*i}], v5, {R(RA)}, s74 offen")
        if i < 9: p("s_add_u32 s74, s74, 3456")

def w1h_compute(p):
    AS = 0; RED = 5120; WT = 8192
    p(f"""v_lshlrev_b32 v48, 4, v0
    v_min_u32 v48, {159*16}, v48
    s_mov_b32 s74, {hex(MODP+3*2560)}""")
    for k in range(4):
        p(f"buffer_load_dwordx4 v[{52+8*k}:{55+8*k}], v48, {WS}, s74 offen {cfg.ld}")
        p(f"buffer_load_dwordx4 v[{56+8*k}:{59+8*k}], v48, {WS}, s74 offen offset:2560 {cfg.ld}")
        if k < 3: p("s_add_u32 s74, s74, 15360")
    for z in range(0, 8, 2):
        p(f"v_pk_add_f32 v[{52+z}:{53+z}], v[{52+z}:{53+z}], v[{60+z}:{61+z}]\nv_pk_add_f32 v[{68+z}:{69+z}], v[{68+z}:{69+z}], v[{76+z}:{77+z}]")
        p(f"v_pk_add_f32 v[{52+z}:{53+z}], v[{52+z}:{53+z}], v[{68+z}:{69+z}]")
    for z in range(4):
        p(f"v_cvt_pk_bf16_f32 v60, v{52+z}, v{56+z}\nv_lshlrev_b32 v{65+2*z}, 16, v60\nv_and_b32 v61, 0xffff0000, v60\nv_add_f32 v61, 1.0, v61")
        rbf1(p, 64+2*z, 61)
    p(f"""v_lshlrev_b32 v48, 1, v48
    ds_write_b128 v48, v[64:67] offset:{AS}
    ds_write_b128 v48, v[68:71] offset:{AS+16}
    v_mul_u32_u24 v49, 80, v4
    s_waitcnt lgkmcnt(0)
    s_barrier""")
    for z in range(5): p(f"ds_read_b128 v[{52+4*z}:{55+4*z}], v49 offset:{AS+16*z}")
    Wp, U, V = 80, 160, 168
    for i in range(10):
        for h in range(4):
            s = 8+4*i+h; d = Wp+8*i+2*h; a = 52+2*i
            p(f"v_lshlrev_b32 v{d}, 16, v{s}\nv_and_b32 v{d+1}, 0xffff0000, v{s}")
            if i == 0: p(f"v_pk_mul_f32 v[{V+2*h}:{V+2*h+1}], v[{d}:{d+1}], v[{a}:{a+1}] op_sel:[0,1] op_sel_hi:[1,1]")
            else: p(f"v_pk_fma_f32 v[{V+2*h}:{V+2*h+1}], v[{d}:{d+1}], v[{a}:{a+1}], v[{V+2*h}:{V+2*h+1}] op_sel:[0,1,0] op_sel_hi:[1,1,1]")
            p(f"v_pk_mul_f32 v[{d}:{d+1}], v[{d}:{d+1}], v[{a}:{a+1}] op_sel_hi:[1,0]")
            if i == 1: p(f"v_pk_add_f32 v[{U+2*h}:{U+2*h+1}], v[{d}:{d+1}], v[{d-8}:{d-7}]")
            elif i > 1: p(f"v_pk_add_f32 v[{U+2*h}:{U+2*h+1}], v[{U+2*h}:{U+2*h+1}], v[{d}:{d+1}]")
    for k in range(8): p(f"v_permlane32_swap_b32 v{U+k}, v{V+k}")
    for k in range(8): p(f"v_add_f32 v{U+k}, v{U+k}, v{V+k}")
    for k in range(4): p(f"v_permlane16_swap_b32 v{U+k}, v{U+4+k}")
    for k in range(4): p(f"v_add_f32 v{U+k}, v{U+k}, v{U+4+k}")
    m = "row_ror:8 row_mask:0xf bank_mask:"
    p(f"""v_add_f32_dpp v{V}, v{U}, v{U} {m}0x3
    v_add_f32_dpp v{V+1}, v{U+1}, v{U+1} {m}0x3
    v_add_f32_dpp v{V}, v{U+2}, v{U+2} {m}0xc
    v_add_f32_dpp v{V+1}, v{U+3}, v{U+3} {m}0xc
    v_lshrrev_b32 v50, 5, v1
    v_lshlrev_b32 v50, 2, v50
    v_add_u32 v50, v50, v3
    v_lshlrev_b32 v50, 2, v50
    v_bfe_u32 v51, v1, 3, 2
    v_add_u32 v50, v50, v51
    v_lshlrev_b32 v50, 6, v50
    v_bfe_u32 v51, v1, 2, 1
    v_lshl_add_u32 v50, v51, 2, v50
    s_lshl_b32 s74, s{sWAVE}, 3
    v_add_u32 v50, s74, v50
    ds_write_b32 v50, v{V} offset:{RED}
    ds_write_b32 v50, v{V+1} offset:{RED+32}
    v_lshlrev_b32 v50, 5, v1
    s_waitcnt lgkmcnt(0)
    s_barrier
    ds_read_b128 v[52:55], v50 offset:{RED}
    ds_read_b128 v[56:59], v50 offset:{RED+16}
    v_pk_add_f32 v[52:53], v[52:53], v[54:55]
    v_pk_add_f32 v[56:57], v[56:57], v[58:59]
    v_pk_add_f32 v[52:53], v[52:53], v[56:57]
    v_add_f32 v52, v52, v53
    v_mul_f32 v53, {fhex(-LOG2E)}, v52
    v_mul_f32 v52, {fhex(-1/640)}, v52
    v_lshlrev_b32 v50, 5, v3""")
    for e in range(8):
        p(f"v_add_u32 v51, {4*e}, v50\nds_bpermute_b32 v{U+e}, v51, v52")
    p(f"""v_lshlrev_b32 v51, 2, v1
    s_lshl_b32 s74, s71, 7
    s_add_u32 s74, s74, {hex(VV-128)}
    s_cmp_eq_u32 s{sWAVE}, 0
    s_cselect_b32 s74, s74, 0x7f000000
    s_mov_b32 exec_lo, 0
    buffer_store_dword v53, v51, {WS}, s74 offen {cfg.st}
    s_mov_b32 exec_lo, -1
    v_mul_u32_u24 v49, 640, v4
    v_lshl_add_u32 v49, v3, 4, v49
    v_mov_b32 v60, 0x3f80
    v_mov_b32 v61, 0""")
    for i in range(10):
        q = 64+4*(i & 3)
        for h in range(4):
            d = Wp+8*i+2*h
            p(f"v_pk_add_f32 v[{d}:{d+1}], v[{d}:{d+1}], v[{U+2*h}:{U+2*h+1}]\nv_cvt_pk_bf16_f32 v{q+h}, v{d}, v{d+1}")
        p(f"v_cndmask_b32 v{q+2}, v{q+2}, v60, s[72:73]\nv_cndmask_b32 v{q+3}, v{q+3}, v61, s[72:73]")
        p(f"ds_write_b128 v49, v[{q}:{q+3}] offset:{WT+64*i}")
    p(f"""v_lshrrev_b32 v50, 4, v1
    v_bfe_u32 v51, v1, 2, 2
    v_lshl_add_u32 v50, v50, 3, v51
    v_lshlrev_b32 v50, 6, v50
    v_lshl_add_u32 v50, v3, 3, v50
    s_mul_i32 s74, s{sWAVE}, {5*2048}
    v_add_u32 v50, s74, v50
    v_lshlrev_b32 v51, 4, v1""")
    for tt in range(2):
        p(f"""s_lshl_b32 s75, s71, 1
        s_add_u32 s75, s75, {tt}
        s_mul_i32 s76, s75, 9363
        s_lshr_b32 s76, s76, 16
        s_mul_i32 s77, s76, 133
        s_add_u32 s75, s75, s77
        s_mul_i32 s76, s{sWAVE}, 35
        s_add_u32 s75, s75, s76
        s_lshl_b32 s75, s75, 10
        s_add_u32 s{78+tt}, s75, {hex(W1F)}""")
    p("s_waitcnt lgkmcnt(0)\ns_barrier")
    for k in range(5):
        for tt in range(2):
            q = 80+8*k+4*tt
            p(f"ds_read_b64_tr_b16 v[{q}:{q+1}], v50 offset:{WT+2048*k+32*tt}\nds_read_b64_tr_b16 v[{q+2}:{q+3}], v50 offset:{WT+2048*k+32*tt+256}")
    for k in range(5):
        for tt in range(2):
            q = 80+8*k+4*tt
            p(f"buffer_store_dwordx4 v[{q}:{q+3}], v51, {WS}, s{78+tt} offen {cfg.st}")
            if k < 4: p(f"s_add_u32 s{78+tt}, s{78+tt}, 7168")

def w2h(p):
    srd(p, RA, sW2, F*D*2)
    p(f"""s_lshr_b32 s72, s{sWAVE}, 1
    s_lshl_b32 s73, s71, 1
    s_add_u32 s72, s72, s73
    s_and_b32 s73, s{sWAVE}, 1
    s_mul_i32 s74, s72, 9363
    s_lshr_b32 s74, s74, 16
    s_mul_i32 s75, s74, 7
    s_sub_u32 s75, s72, s75
    s_lshl_b32 s74, s74, 1
    s_cmp_ge_u32 s75, 3
    s_cselect_b32 s76, 1, 0
    s_cselect_b32 s77, 3, 0
    s_sub_u32 s77, s75, s77
    s_lshl_b32 s77, s77, 1
    s_add_u32 s77, s77, s73
    s_cmp_eq_u32 s75, 6
    s_cselect_b32 s76, s73, s76
    s_cselect_b32 s77, 6, s77
    s_add_u32 s74, s74, s76
    s_mul_i32 s74, s74, 108
    s_lshl_b32 s76, s77, 4
    s_add_u32 s74, s74, s76
    s_mul_i32 s74, s74, 1280
    s_mul_i32 s76, s{sWAVE}, 20480
    s_mov_b32 m0, s76
    v_lshlrev_b32 v3, 4, v1""")
    for q in range(4):
        if q == 3: p("s_cmp_eq_u32 s77, 6\ns_cselect_b32 s74, 0x7f000000, s74")
        for i in range(5):
            p(f"buffer_load_dwordx4 v3, {R(RA)}, s74 offen lds\ns_add_u32 m0, m0, 1024\ns_add_u32 s74, s74, 1024")
    p(f"""v_lshrrev_b32 v4, 4, v1
    v_bfe_u32 v5, v1, 2, 2
    v_and_b32 v6, 3, v1
    v_mul_u32_u24 v4, 5120, v4
    v_mul_u32_u24 v5, 1280, v5
    v_add_u32 v4, v4, v5
    s_lshr_b32 s75, s{sWAVE}, 1
    s_mul_i32 s75, s75, 40960
    s_mul_i32 s76, s73, 640
    s_add_u32 s75, s75, s76
    v_add_u32 v4, s75, v4
    v_lshl_add_u32 v5, v6, 3, v4
    v_lshl_add_u32 v4, v6, 4, v4
    s_mul_i32 s75, s73, {4*286720}
    s_mul_i32 s76, s72, 5120
    s_add_u32 s75, s75, s76
    s_add_u32 s75, s75, {hex(W2F)}
    s_waitcnt vmcnt(0)
    s_barrier""")
    for cb in range(4):
        for nt in range(5):
            q = 8+20*cb+4*nt
            va = 4 if nt < 4 else 5
            off = 160*cb + (64*(nt >> 1) + 8*(nt & 1) if nt < 4 else 128)
            p(f"ds_read_b64_tr_b16 v[{q}:{q+1}], v{va} offset:{off}\nds_read_b64_tr_b16 v[{q+2}:{q+3}], v{va} offset:{off+20480}")
    for cb in range(4):
        for nt in range(5):
            q = 8+20*cb+4*nt
            if nt < 4: p(f"buffer_store_dwordx4 v[{q}:{q+3}], v3, {WS}, s75 offen offset:{1024*nt} {cfg.st}")
            else: p(f"s_add_u32 s76, s75, 4096\nbuffer_store_dwordx4 v[{q}:{q+3}], v3, {WS}, s76 offen {cfg.st}")
        if cb < 3: p("s_add_u32 s75, s75, 286720")

def gbh(p):
    p(f"""v_lshlrev_b32 v48, 4, v0
    v_min_u32 v48, {159*16}, v48
    s_mov_b32 s74, {hex(MODP+5*2560)}""")
    for k in range(4):
        p(f"buffer_load_dwordx4 v[{52+4*k}:{55+4*k}], v48, {WS}, s74 offen {cfg.ld}")
        if k < 3: p("s_add_u32 s74, s74, 15360")
    for z in range(4):
        p(f"v_add_f32 v{52+z}, v{52+z}, v{56+z}\nv_add_f32 v{60+z}, v{60+z}, v{64+z}\nv_add_f32 v{52+z}, v{52+z}, v{60+z}")
        rbf1(p, 52+z, 52+z)
        p(f"v_mul_f32 v{52+z}, {fhex(-LN2)}, v{52+z}")
    p(f"s_mov_b32 s74, {hex(GB)}\nbuffer_store_dwordx4 v[52:55], v48, {WS}, s74 offen {cfg.st}")

sRB, sCB = 63, 64
VVL = 143360
def g1_ids(p):
    p(f"""s_lshr_b32 s{sRB}, s{sXCD}, 1
    s_lshl_b32 s{sRB}, s{sRB}, 2
    s_lshr_b32 s65, s{sI}, 3
    s_add_u32 s{sRB}, s{sRB}, s65
    s_and_b32 s{sCB}, s{sXCD}, 1
    s_lshl_b32 s{sCB}, s{sCB}, 3
    s_and_b32 s65, s{sI}, 7
    s_add_u32 s{sCB}, s{sCB}, s65""")
def g1_wload(p):
    p(f"""s_mul_i32 s65, s{sCB}, 143360
    s_lshl_b32 s66, s{sWAVE}, 10
    s_add_u32 s65, s65, s66
    s_add_u32 s65, s65, {hex(W1F)}
    s_mov_b32 m0, s66
    v_lshlrev_b32 v3, 4, v1
    v_lshlrev_b32 v4, 2, v1""")
    for n in range(35):
        p(f"buffer_load_dwordx4 v3, {WS}, s65 offen {cfg.ld} lds")
        if n < 34: p("s_add_u32 m0, m0, 4096\ns_add_u32 s65, s65, 4096")
    p(f"""s_mul_i32 s65, s{sCB}, 448
    s_and_b32 s66, s{sWAVE}, 1
    s_lshl_b32 s66, s66, 8
    s_add_u32 s65, s65, s66
    s_add_u32 s65, s65, {hex(VV)}
    s_add_u32 m0, s66, {VVL}""")
    p(f"buffer_load_dword v4, {WS}, s65 offen {cfg.ld} lds", ('tok', 'w1'))
Bf = lambda ks, mt: 96+8*ks+4*mt
def g1_xload(p):
    p(f"""v_lshrrev_b32 v5, 4, v1
    v_and_b32 v6, 15, v1
    v_lshlrev_b32 v7, 15, v5
    v_lshl_add_u32 v7, v6, 4, v7
    s_lshl_b32 s65, s{sRB}, 2
    s_add_u32 s65, s65, s{sWAVE}
    s_lshl_b32 s65, s65, 8
    s_add_u32 s65, s65, {hex(X2)}
    s_add_u32 s66, s65, 16384""")
    for ks in range(20):
        p(f"buffer_load_dwordx4 {vr(Bf(ks,0),4)}, v7, {WS}, s65 offen {cfg.ld}\nbuffer_load_dwordx4 {vr(Bf(ks,1),4)}, v7, {WS}, s66 offen {cfg.ld}")
        if ks < 19: p("s_add_u32 s65, s65, 0x20000\ns_add_u32 s66, s66, 0x20000")
def g1_main(p, groups=((6,0,1),(2,3),(4,5))):
    Dm = lambda ft, mt: 32+4*(2*ft+mt)
    Sm = lambda mt: 88+4*mt
    p(f"""v_and_b32 v8, 3, v6
    v_cmp_eq_u32 s[68:69], 1, v8
    v_cmp_eq_u32 s[70:71], 2, v8
    v_cmp_eq_u32 s[72:73], 3, v8
    v_lshrrev_b32 v8, 2, v6
    v_lshl_add_u32 v8, v8, 4, v6
    v_lshlrev_b32 v8, 2, v8
    v_add_u32 v9, 48, v6
    v_lshlrev_b32 v9, 2, v9
    v_lshlrev_b32 v10, 4, v5
    v_add_u32 v10, {VVL}, v10
    v_add_u32 v4, 0xe000, v3
    v_add_u32 v5, 0x1c000, v3
    s_lshl_b32 s65, s{sRB}, 3
    s_lshl_b32 s66, s{sWAVE}, 1
    s_add_u32 s65, s65, s66
    s_mul_i32 s65, s65, 56
    s_lshr_b32 s66, s{sCB}, 1
    s_mul_i32 s66, s66, 7
    s_add_u32 s65, s65, s66
    s_and_b32 s66, s{sCB}, 1
    s_lshl_b32 s67, s66, 3
    s_mul_i32 s66, s66, 3
    s_add_u32 s74, s65, s66
    s_lshl_b32 s74, s74, 10
    s_add_u32 s74, s74, {hex(H1)}
    s_add_u32 s75, s74, {56*1024}
    s_add_u32 s76, s65, 6
    s_lshl_b32 s76, s76, 10
    s_add_u32 s76, s76, s67
    s_add_u32 s76, s76, {hex(H1)}
    s_add_u32 s77, s76, {56*1024}""")
    p("s_nop 0", ('waitvm', 'w1'))
    p("s_barrier")
    def wread(ks, ft, slot):
        n = 7*ks+ft; b = n // 56
        return mk(f"ds_read_b128 {ar(4*slot,4)}, v{(3,4,5)[b]} offset:{1024*(n-56*b)}")
    def stats():
        o = []
        for mt in range(2):
            s = Sm(mt); t = 12+mt; u = 14+mt
            o += mk(f"""v_cndmask_b32 v{t}, v{s}, v{s+1}, s[68:69]
            v_cndmask_b32 v{t}, v{t}, v{s+2}, s[70:71]
            v_cndmask_b32 v{t}, v{t}, v{s+3}, s[72:73]
            ds_bpermute_b32 v{u}, v9, v{Dm(6,mt)}
            ds_bpermute_b32 v{t}, v8, v{t}""")
        for x in ("v_mul_f32 v{u}, %s, v{u}" % fhex(1/640), "v_mul_f32 v{t}, %s, v{t}" % fhex(1/640), "v_fma_f32 v{t}, -v{u}, v{u}, v{t}",
                  "v_max_f32 v{t}, 0, v{t}", "v_cvt_pk_bf16_f32 v{t}, v{t}, v{t}", "v_lshlrev_b32 v{t}, 16, v{t}", "v_add_f32 v{t}, %s, v{t}" % fhex(1e-5),
                  "v_cvt_pk_bf16_f32 v{t}, v{t}, v{t}", "v_lshlrev_b32 v{t}, 16, v{t}", "v_sqrt_f32 v{t}, v{t}", "v_cvt_pk_bf16_f32 v{t}, v{t}, v{t}",
                  "v_lshlrev_b32 v{t}, 16, v{t}", "v_rcp_f32 v{t}, v{t}", "v_mul_f32 v{t}, %s, v{t}" % fhex(-LOG2E)):
            for mt in range(2): o += mk(x.format(t=12+mt, u=14+mt))
        return o
    def epi(ft):
        o = mk(f"ds_read_b128 v[16:19], v10 offset:{64*ft}")
        for mt in range(2):
            d = Dm(ft, mt); base = Dm(ft & ~1, mt) if ft < 6 else d
            for r in range(4): o += mk(f"v_fma_f32 v{d+r}, v{d+r}, v{12+mt}, v{16+r}")
            T = 20+4*mt
            for r in range(4): o += mk(f"v_exp_f32 v{T+r}, v{d+r}")
            for r in range(4): o += mk(f"v_add_f32 v{T+r}, 1.0, v{T+r}")
            for r in range(4): o += mk(f"v_rcp_f32 v{T+r}, v{T+r}")
            for r in range(4): o += mk(f"v_mul_f32 v{d+r}, v{d+r}, v{T+r}")
            k = 2*(ft & 1) if ft < 6 else 0
            o += mk(f"v_cvt_pk_bf16_f32 v{base+k}, v{d}, v{d+1}\nv_cvt_pk_bf16_f32 v{base+k+1}, v{d+2}, v{d+3}")
            if ft == 6: o += mk(f"buffer_store_dwordx2 {vr(base,2)}, v3, {WS}, s{76+mt} offen {cfg.st}")
            elif ft & 1: o += mk(f"buffer_store_dwordx4 {vr(base,4)}, v3, {WS}, s{74+mt} offen offset:{1024*(ft>>1)} {cfg.st}")
        return o
    main = []; fill = []; rates = []
    NS = 16; seq = [(g, ks, ft) for g, grp in enumerate(groups) for ks in range(20) for ft in grp]
    AH = 6
    pre = []
    for z in range(AH): pre += wread(seq[z][1], seq[z][2], z % NS)
    p.extend(pre)
    for z, (g, ks, ft) in enumerate(seq):
        first = ft == groups[g][0]
        grp = []
        if g == 0 and first:
            grp += mk(f"v_swap_b32 v{Bf(ks,0)+2}, v{Bf(ks,1)}\nv_swap_b32 v{Bf(ks,0)+3}, v{Bf(ks,1)+1}")
        if g > 0 and ks == 0 and first:
            lst = []
            if g == 1: lst += stats()
            for f2 in groups[g-1]: lst += epi(f2)
            fill.append((len(main)+2, lst))
        for mt in range(2):
            c = '0' if ks == 0 else vr(Dm(ft, mt), 4)
            ins = mk(f"v_mfma_f32_16x16x32_bf16 {vr(Dm(ft,mt),4)}, {ar(4*(z % NS),4)}, {vr(Bf(ks,mt),4)}, {c}")
            has = mt == 0 and z+AH < len(seq)
            if has: ins += wread(seq[z+AH][1], seq[z+AH][2], (z+AH) % NS)
            main.append(grp+ins); grp = []; rates.append(1.0 if has else 2.0)
        if g == 0 and ft == groups[0][-1]:
            for mt in range(2):
                c = '0' if ks == 0 else vr(Sm(mt), 4)
                main.append(mk(f"v_mfma_f32_16x16x32_bf16 {vr(Sm(mt),4)}, {vr(Bf(ks,mt),4)}, {vr(Bf(ks,mt),4)}, {c}")); rates.append(2.0)
    lst = []
    for f2 in groups[-1]: lst += epi(f2)
    fill.append((len(main), lst))
    p.extend(interleave(main, fill, lambda g: rates[g]*1.5))

sRB2, sCB2 = 63, 64
def W2r(k, nt):
    z = 5*k+nt
    return ar(4*z, 4) if z < 64 else vr(232+4*(z-64), 4)
def g2_ids(p):
    p(f"""s_lshl_b32 s{sRB2}, s{sXCD}, 2
    s_lshr_b32 s65, s{sI}, 3
    s_add_u32 s{sRB2}, s{sRB2}, s65
    s_and_b32 s{sCB2}, s{sI}, 7""")
def g2_wload(p):
    p(f"""s_mul_i32 s65, s{sCB2}, 286720
    s_mul_i32 s66, s{sWAVE}, {14*5120}
    s_add_u32 s65, s65, s66
    s_add_u32 s65, s65, {hex(W2F)}
    v_lshlrev_b32 v3, 4, v1""")
    for z in range(70):
        p(f"buffer_load_dwordx4 {W2r(z//5, z%5)}, v3, {WS}, s65 offen offset:{1024*(z%4)} {cfg.ld}")
        if z % 4 == 3: p("s_add_u32 s65, s65, 4096")
RING = 28
Hr = lambda z: 120+4*(z % RING)
def g2_hload(z):
    i, k = divmod(z, 14)
    o = []
    if k % 4 == 0 and k: o += mk(f"s_add_u32 s{66+i}, s{66+i}, 4096")
    o += mk(f"buffer_load_dwordx4 {vr(Hr(z),4)}, v3, {WS}, s{66+i} offen offset:{1024*(k%4)} {cfg.ld}")
    return o
def g2_hids(p):
    for i in range(4):
        p(f"""s_add_u32 s70, s{sWAVE}, {i+1}
        s_and_b32 s70, s70, 3
        s_mul_i32 s{72+i}, s70, 15360
        s_lshl_b32 s71, s{sRB2}, 2
        s_add_u32 s70, s70, s71
        s_mul_i32 s70, s70, 56
        s_mul_i32 s71, s{sWAVE}, 14
        s_add_u32 s70, s70, s71
        s_lshl_b32 s70, s70, 10
        s_add_u32 s{66+i}, s70, {hex(H1)}""")
def g2_main(p):
    acc = lambda i, nt: 40+20*(i & 1)+4*nt
    Pp, Q1, Q2 = 80, 100, 40
    srd(p, RA, sOUT, L*D*2)
    for z in range(RING): p.extend(g2_hload(z))
    p(f"""v_lshrrev_b32 v5, 4, v1
    v_and_b32 v6, 15, v1
    v_add_u32 v7, s72, v3
    v_add_u32 v8, s73, v3
    v_add_u32 v9, s74, v3
    v_add_u32 v4, s75, v3""")
    def epi_loads():
        o = mk(f"""v_lshlrev_b32 v80, 4, v6
        v_lshl_add_u32 v81, v5, 14, v80
        v_lshl_add_u32 v80, v5, 15, v80
        s_mul_i32 s76, s{sCB2}, {20*16384}
        s_lshl_b32 s77, s{sRB2}, 1
        s_lshr_b32 s78, s{sWAVE}, 1
        s_add_u32 s77, s77, s78
        s_lshl_b32 s77, s77, 8
        s_add_u32 s76, s76, s77
        s_and_b32 s78, s{sWAVE}, 1
        s_lshl_b32 s78, s78, 3
        s_add_u32 s76, s76, s78
        s_add_u32 s76, s76, {hex(X2)}""")
        for nt in range(5):
            g = 8*(nt >> 1)+(nt & 1) if nt < 4 else 16
            o += mk(f"s_add_u32 s77, s76, {g*16384}\nbuffer_load_dwordx2 {vr(10+2*nt,2)}, v{80 if nt < 4 else 81}, {WS}, s77 offen {cfg.ld}")
        o += mk(f"""v_lshlrev_b32 v80, 5, v5
        v_lshlrev_b32 v81, 4, v5
        s_mul_i32 s76, s{sCB2}, 320
        s_add_u32 s76, s76, {hex(GB)}""")
        for nt in range(5):
            off = 128*(nt >> 1)+16*(nt & 1) if nt < 4 else 256
            o += mk(f"buffer_load_dwordx4 {vr(20+4*nt,4)}, v{80 if nt < 4 else 81}, {WS}, s76 offen offset:{off} {cfg.ld}")
        return o
    main = []; fill = []; rates = []
    for z in range(56):
        i, k = divmod(z, 14)
        if k == 0 and i > 0:
            lst = []
            for nt in range(5): lst += mk(f"ds_write_b128 v{7+i-1}, {vr(acc(i-1,nt),4)} offset:{(i-1)*5120+1024*nt}")
            if i == 3:
                lst += mk("s_waitcnt lgkmcnt(0)\ns_barrier")
                for s_, q in enumerate((Pp, Q1, Q2)):
                    for nt in range(5): lst += mk(f"ds_read_b128 {vr(q+4*nt,4)}, v4 offset:{s_*5120+1024*nt}")
                for x in range(20): lst += mk(f"v_add_f32 v{Pp+x}, v{Pp+x}, v{Q1+x}")
                for x in range(20): lst += mk(f"v_add_f32 v{Pp+x}, v{Pp+x}, v{Q2+x}")
                for nt in range(5):
                    for h in range(2):
                        lst += mk(f"v_lshlrev_b32 v{Q1+4*nt+2*h}, 16, v{10+2*nt+h}\nv_and_b32 v{Q1+4*nt+2*h+1}, 0xffff0000, v{10+2*nt+h}")
                for x in range(20): lst += mk(f"v_fmac_f32 v{Q1+x}, v{20+x}, v{Pp+x}")
                lst += mk(f"""v_and_b32 v7, 7, v6
                v_lshrrev_b32 v8, 3, v6
                v_lshlrev_b32 v7, 5, v7
                v_lshl_add_u32 v7, v8, 2, v7
                v_mul_u32_u24 v7, 1280, v7
                v_lshl_add_u32 v8, v5, 3, v7
                v_lshl_add_u32 v7, v5, 4, v7
                s_lshr_b32 s76, s{sRB2}, 2
                s_lshl_b32 s76, s76, 8
                s_and_b32 s77, s{sRB2}, 3
                s_add_u32 s76, s76, s77
                s_lshl_b32 s77, s{sWAVE}, 3
                s_add_u32 s76, s76, s77
                s_mul_i32 s76, s76, 1280
                s_mul_i32 s77, s{sCB2}, 160
                s_add_u32 s76, s76, s77""")
            fill.append((len(main)+2, lst))
        for nt in range(5):
            c = '0' if k == 0 else vr(acc(i, nt), 4)
            ins = mk(f"v_mfma_f32_16x16x32_bf16 {vr(acc(i,nt),4)}, {W2r(k,nt)}, {vr(Hr(z),4)}, {c}")
            r = 2.0
            if nt == 4 and z+RING < 56: ins += g2_hload(z+RING); r = 0.5
            if nt == 4 and z+RING == 56: fill.append((len(main)+1, epi_loads()))
            main.append(ins); rates.append(r)
    p.extend(interleave(main, fill, lambda g: rates[g]))
    for x in range(20): p(f"v_fmac_f32 v{Q1+x}, v{20+x}, v{acc(3,0)+x}")
    for z in range(10): p(f"v_cvt_pk_bf16_f32 v{Pp+z}, v{Q1+2*z}, v{Q1+2*z+1}")
    p(f"""buffer_store_dwordx4 {vr(Pp,4)}, v7, {R(RA)}, s76 offen
    buffer_store_dwordx4 {vr(Pp+4,4)}, v7, {R(RA)}, s76 offen offset:64
    buffer_store_dwordx2 {vr(Pp+8,2)}, v8, {R(RA)}, s76 offen offset:128""")

def kernel_text(name, segs):
    s = f".p2align 8\n.globl {name}\n.type {name},@function\n{name}:\n"
    for sg in segs: s += text(finalize(sg.ins))
    return s
def kd(name, vg=512, sg=102):
    return f""".p2align 6
.amdhsa_kernel {name}
  .amdhsa_next_free_vgpr {vg}
  .amdhsa_next_free_sgpr {sg}
  .amdhsa_accum_offset 256
  .amdhsa_group_segment_fixed_size 0
  .amdhsa_kernarg_size 120
  .amdhsa_user_sgpr_count 2
  .amdhsa_user_sgpr_kernarg_segment_ptr 1
  .amdhsa_system_sgpr_workgroup_id_x 1
.end_amdhsa_kernel
"""
def roles2(p, lab):
    p(f"""s_cmp_lt_u32 s{sI}, 20
    s_cbranch_scc1 {lab}_conv
    s_cmp_lt_u32 s{sI}, 27
    s_cbranch_scc1 {lab}_w1
    s_sub_u32 s71, s{sI}, 27
    s_lshl_b32 s71, s71, 3
    s_add_u32 s71, s71, s{sXCD}
    s_cmp_lt_u32 s71, 28
    s_cbranch_scc1 {lab}_w2
    s_cmp_eq_u32 s71, 28
    s_cbranch_scc0 {lab}_end""")

import os
DEBUG = os.environ.get('DEBUG')
def dump_lds(p):
    p(f"v_lshlrev_b32 v64, 4, v0\ns_lshl_b32 s90, s71, 16\ns_add_u32 s90, s90, {hex(H1)}\nv_add_u32 v65, {FT0}, v64")
    for k in range(9):
        p(f"ds_read_b128 v[68:71], v64 offset:{4096*k}\nbuffer_store_dwordx4 v[68:71], v64, {WS}, s90 offen\ns_add_u32 s90, s90, 4096\ns_waitcnt vmcnt(0)")
    for k in range(5):
        p(f"ds_read_b128 v[68:71], v65 offset:{4096*k}\nbuffer_store_dwordx4 v[68:71], v64, {WS}, s90 offen\ns_add_u32 s90, s90, 4096\ns_waitcnt vmcnt(0)")
def multi():
    out = ""
    for k in range(1, 5): out += f"; @launch kernel=k{k}_kernel grid=(256,1,1) block=(256,1,1) lds=163840\n"
    out += '.amdgcn_target "amdgcn-amd-amdhsa--gfx950"\n.text\n'
    p = Prog(); preamble(p, 'k1'); phase1_loads(p); phase1_compute(p); p("k1_end:\ns_endpgm")
    out += kernel_text('k1_kernel', [p])
    p0 = Prog(); preamble(p0, 'k2'); roles2(p0, 'k2')
    pg = Prog(); gbh(pg); pg("s_endpgm\nk2_w2:")
    p2 = Prog(); w2h(p2); p2("s_endpgm\nk2_w1:")
    p1 = Prog(); p1(f"s_mul_i32 s71, s{sXCD}, 7\ns_add_u32 s71, s71, s{sI}\ns_sub_u32 s71, s71, 20"); w1h_loads(p1); w1h_compute(p1); p1("s_endpgm\nk2_conv:")
    pc = Prog(); pc(f"s_mul_i32 s71, s{sXCD}, 20\ns_add_u32 s71, s71, s{sI}")
    kgen_loads(pc); conv_loads(pc); kgen_compute(pc); pc("s_waitcnt lgkmcnt(0)\ns_barrier"); conv_prep(pc); conv_addr(pc)
    pc("s_waitcnt lgkmcnt(0)\ns_barrier")
    if DEBUG: dump_lds(pc)
    conv_main(pc); conv_store(pc); pc("k2_end:\ns_endpgm")
    out += kernel_text('k2_kernel', [p0, pg, p2, p1, pc])
    p = Prog(); preamble(p, 'k3'); g1_ids(p); g1_wload(p); g1_xload(p); g1_main(p); p("k3_end:\ns_endpgm")
    out += kernel_text('k3_kernel', [p])
    p = Prog(); preamble(p, 'k4'); g2_ids(p); g2_wload(p); g2_hids(p); g2_main(p); p("k4_end:\ns_endpgm")
    out += kernel_text('k4_kernel', [p])
    out += '.section .rodata,"a"\n' + ''.join(kd(f'k{k}_kernel') for k in range(1, 5))
    return out

if __name__ == '__main__':
    open(sys.argv[1], 'w').write(multi())
```

```python
import sys, os
from asmlib import *
from layout import *
import struct
def fhex(x): return '0x%08x' % struct.unpack('<I', struct.pack('<f', x))[0]

KNAME = 'adaLN_cond__ssm_conv_s4d__dense_activation_silu__prompt'
sX, sLA, sAI, sCR, sCI, sDT, sDS = 4, 6, 8, 10, 12, 14, 16
sW1, sW2, sC, sWM, sOUT, sDBG, sWS = 20, 22, 24, 26, 28, 30, 32
WS = 's[36:39]'
RA, RB, RC, RD, RE, RF = 40, 44, 48, 52, 56, 96
sWAVE, sXCD, sI = 60, 61, 62
def R(b): return f's[{b}:{b+3}]'
def srd(p, b, ptr, size):
    p(f"""s_mov_b32 s{b}, s{ptr}
    s_mov_b32 s{b+1}, s{ptr+1}
    s_mov_b32 s{b+2}, {size}
    s_mov_b32 s{b+3}, 0x20000""")
def vr(a, n): return f'v[{a}:{a+n-1}]' if n > 1 else f'v{a}'
def ar(a, n): return f'a[{a}:{a+n-1}]' if n > 1 else f'a{a}'

class Cfg:
    fused = False
    st = ''
    ld = ''
cfg = Cfg()

def preamble(p, lab):
    p(f"""s_load_dwordx16 s[4:19], s[0:1], 0
    s_load_dwordx8 s[20:27], s[0:1], 64
    s_load_dwordx4 s[28:31], s[0:1], 96
    s_load_dwordx2 s[32:33], s[0:1], 112
    s_cmp_ge_u32 s2, 256
    s_cbranch_scc1 {lab}_end
    v_and_b32 v1, 63, v0
    v_lshrrev_b32 v2, 6, v0
    s_and_b32 s{sXCD}, s2, 7
    s_lshr_b32 s{sI}, s2, 3
    v_readfirstlane_b32 s{sWAVE}, v2
    s_waitcnt lgkmcnt(0)""")
    srd(p, 36, sWS, hex(WS_END))

def rbf1(p, d, s):
    p(f"v_cvt_pk_bf16_f32 v{d}, v{s}, v{s}\nv_lshlrev_b32 v{d}, 16, v{d}")

def phase1_loads(p):
    srd(p, RA, sX, L*D*2); srd(p, RB, sWM, D*6*D*2); srd(p, RC, sC, D*2)
    p(f"""s_lshr_b32 s63, s2, 5
    s_bfe_u32 s64, s2, 0x30002
    s_and_b32 s65, s2, 3
    s_lshl_b32 s66, s63, 8
    s_lshl_b32 s67, s64, 2
    s_add_u32 s66, s66, s67
    s_add_u32 s66, s66, s65
    s_mul_i32 s66, s66, 1280
    v_and_b32 v3, 7, v0
    v_lshrrev_b32 v4, 3, v0
    v_mul_u32_u24 v5, 40960, v3
    v_lshl_add_u32 v5, v4, 3, v5""")
    for k in range(5):
        p(f"buffer_load_dwordx2 v[{10+4*k}:{11+4*k}], v5, {R(RA)}, s66 offen offset:{256*k}")
    p(f"""s_lshl_b32 s64, s64, 12
    s_lshl_b32 s67, s65, 10
    s_lshl_b32 s63, s63, 7
    s_add_u32 s63, s63, s64
    s_add_u32 s63, s63, s67
    s_add_u32 s63, s63, {hex(XP)}
    v_lshlrev_b32 v6, 15, v4
    v_lshl_add_u32 v6, v3, 4, v6""")
    p(f"""s_lshr_b32 s64, s2, 2
    s_min_u32 s67, s64, 59
    s_mul_i32 s68, s65, 160
    s_mul_i32 s69, s{sWAVE}, 40
    s_add_u32 s68, s68, s69
    s_mul_i32 s69, s68, 7680
    s_lshl_b32 s70, s67, 7
    s_add_u32 s69, s69, s70
    s_lshl_b32 s68, s68, 1
    v_lshrrev_b32 v7, 3, v1
    v_and_b32 v90, 7, v1
    v_mul_u32_u24 v91, 7680, v7
    v_lshl_add_u32 v91, v90, 4, v91
    v_lshlrev_b32 v7, 1, v7""")
    for i in range(5):
        p(f"buffer_load_ushort v{68+i}, v7, {R(RC)}, s68 offen offset:{16*i}")
    for i in range(5):
        p(f"buffer_load_dwordx4 v[{48+4*i}:{51+4*i}], v91, {R(RB)}, s69 offen")
        if i < 4: p("s_add_u32 s69, s69, 61440")
    p(f"""s_mul_i32 s68, s65, 15360
    s_lshl_b32 s70, s67, 8
    s_add_u32 s68, s68, s70
    s_add_u32 s68, s68, {hex(MODP)}
    s_cmp_lt_u32 s64, 60
    s_cselect_b32 s68, s68, 0x7f000000""")

def phase1_compute(p, ldsb=0):
    for k in range(5):
        for h in range(2):
            s = 10+4*k+h; d = 28+4*k+2*h
            p(f"v_lshlrev_b32 v{d}, 16, v{s}\nv_and_b32 v{d+1}, 0xffff0000, v{s}")
    p("v_pk_add_f32 v[82:83], v[28:29], v[30:31]\nv_pk_mul_f32 v[84:85], v[28:29], v[28:29]\nv_pk_fma_f32 v[84:85], v[30:31], v[30:31], v[84:85]")
    for k in range(2, 10):
        a = 28+2*k
        p(f"v_pk_add_f32 v[82:83], v[82:83], v[{a}:{a+1}]\nv_pk_fma_f32 v[84:85], v[{a}:{a+1}], v[{a}:{a+1}], v[84:85]")
    p(f"""v_add_f32 v82, v82, v83
    v_add_f32 v84, v84, v85
    v_add_f32_dpp v82, v82, v82 row_ror:8 row_mask:0xf bank_mask:0xf
    v_add_f32_dpp v84, v84, v84 row_ror:8 row_mask:0xf bank_mask:0xf
    v_permlane16_swap_b32 v82, v84
    v_add_f32 v82, v82, v84
    v_mov_b32 v84, v82
    v_permlane32_swap_b32 v82, v84
    v_add_f32 v82, v82, v84
    v_bfe_u32 v86, v1, 4, 1
    v_lshl_add_u32 v86, v3, 1, v86
    v_lshlrev_b32 v86, 4, v86
    s_lshl_b32 s70, s{sWAVE}, 2
    s_add_u32 s70, s70, {ldsb}
    v_add_u32 v86, s70, v86
    ds_write_b32 v86, v82""")
    for i in range(5):
        c = 68+i
        p(f"""v_lshlrev_b32 v{c}, 16, v{c}
        v_mul_f32 v87, {fhex(-LOG2E)}, v{c}
        v_exp_f32 v87, v87
        v_add_f32 v87, 1.0, v87
        v_rcp_f32 v87, v87
        v_mul_f32 v{c}, v{c}, v87""")
        rbf1(p, c, c)
    for i in range(5):
        p(f"v_mov_b32 v88, v{68+i}")
        for h in range(4):
            s = 48+4*i+h
            p(f"v_lshlrev_b32 v92, 16, v{s}\nv_and_b32 v93, 0xffff0000, v{s}")
            a = 74+2*h
            if i == 0: p(f"v_pk_mul_f32 v[{a}:{a+1}], v[92:93], v[88:89] op_sel_hi:[1,0]")
            else: p(f"v_pk_fma_f32 v[{a}:{a+1}], v[92:93], v[88:89], v[{a}:{a+1}] op_sel_hi:[1,0,1]")
    for k in range(4): p(f"v_permlane32_swap_b32 v{74+k}, v{78+k}")
    for k in range(4): p(f"v_add_f32 v{74+k}, v{74+k}, v{78+k}")
    for k in range(2): p(f"v_permlane16_swap_b32 v{74+k}, v{76+k}")
    for k in range(2): p(f"v_add_f32 v{74+k}, v{74+k}, v{76+k}")
    p(f"""v_add_f32_dpp v76, v74, v74 row_ror:8 row_mask:0xf bank_mask:0x3
    v_add_f32_dpp v76, v75, v75 row_ror:8 row_mask:0xf bank_mask:0xc
    v_lshrrev_b32 v87, 3, v1
    v_lshl_add_u32 v87, v90, 3, v87
    v_lshlrev_b32 v87, 4, v87
    v_add_u32 v87, s70, v87
    ds_write_b32 v87, v76 offset:256
    v_lshlrev_b32 v86, 5, v3
    v_lshlrev_b32 v87, 4, v1
    s_waitcnt lgkmcnt(0)
    s_barrier
    ds_read_b128 v[48:51], v86 offset:{ldsb}
    ds_read_b128 v[52:55], v86 offset:{ldsb+16}
    ds_read_b128 v[56:59], v87 offset:{ldsb+256}
    v_add_f32 v48, v48, v49
    v_add_f32 v50, v50, v51
    v_add_f32 v52, v52, v53
    v_add_f32 v54, v54, v55
    v_add_f32 v48, v48, v50
    v_add_f32 v52, v52, v54
    v_mul_f32 v48, {fhex(1/640)}, v48
    v_mul_f32 v52, {fhex(1/640)}, v52
    v_fma_f32 v52, -v48, v48, v52
    v_max_f32 v52, 0, v52""")
    rbf1(p, 52, 52)
    p(f"v_add_f32 v52, {fhex(1e-5)}, v52")
    rbf1(p, 52, 52)
    p("v_sqrt_f32 v52, v52")
    rbf1(p, 48, 48)
    rbf1(p, 52, 52)
    p("""v_rcp_f32 v52, v52
    v_add_f32 v56, v56, v57
    v_add_f32 v58, v58, v59
    v_mul_f32 v54, -v48, v52
    v_add_f32 v56, v56, v58
    v_lshlrev_b32 v87, 2, v1""")
    for k in range(5):
        for h in range(2):
            a = 28+4*k+2*h
            p(f"v_pk_fma_f32 v[{a}:{a+1}], v[{a}:{a+1}], v[52:53], v[54:55] op_sel_hi:[1,0,0]")
            p(f"v_cvt_pk_bf16_f32 v{8+4*k+h}, v{a}, v{a+1}")
        p(f"buffer_store_dwordx4 v[{8+4*k}:{11+4*k}], v6, {WS}, s63 offen {cfg.st}")
        if k < 4: p("s_add_u32 s63, s63, 0x100000")
    p(f"""s_cmp_eq_u32 s{sWAVE}, 0
    s_cselect_b32 s68, s68, 0x7f000000
    buffer_store_dword v56, v87, {WS}, s68 offen {cfg.st}""")

STG = 33792
FT0 = 4*STG
FTS = 4224
HT, XT, EXB = 0, 18432, 36864
def kgen_loads(p):
    srd(p, RA, sLA, D*NM*2); srd(p, RB, sAI, D*NM*2); srd(p, RC, sCR, D*NM*2); srd(p, RD, sCI, D*NM*2)
    srd(p, RE, sDT, D*2); srd(p, RF, sDS, D*2)
    p(f"""s_lshl_b32 s72, s71, 2
    s_add_u32 s72, s72, s{sWAVE}
    s_lshl_b32 s73, s72, 8
    s_lshl_b32 s72, s72, 1
    v_lshlrev_b32 v100, 2, v1
    v_mov_b32 v101, 0
    buffer_load_ushort v106, v101, {R(RE)}, s72 offen
    buffer_load_dword v102, v100, {R(RA)}, s73 offen
    buffer_load_dword v103, v100, {R(RB)}, s73 offen
    buffer_load_dword v104, v100, {R(RC)}, s73 offen
    buffer_load_dword v105, v100, {R(RD)}, s73 offen
    buffer_load_ushort v107, v101, {R(RF)}, s72 offen""")

def cmul(d, x, w, t):
    return [f"v_pk_mul_f32 v[{t}:{t+1}], v[{x}:{x+1}], v[{w}:{w+1}] op_sel_hi:[1,0]",
            f"v_pk_fma_f32 v[{d}:{d+1}], v[{x}:{x+1}], v[{w}:{w+1}], v[{t}:{t+1}] op_sel:[1,1,0] op_sel_hi:[0,1,1] neg_lo:[1,0,0]"]
sDK = 74
def kgen_compute(p):
    p(f"""v_lshlrev_b32 v106, 16, v106
    v_mul_f32 v106, {fhex(LOG2E)}, v106
    v_exp_f32 v106, v106
    v_lshlrev_b32 v107, 16, v107""")
    rbf1(p, 106, 106)
    p(f"v_readfirstlane_b32 s{sDK}, v107")
    B = [110, 140]
    W1_, W8_, W256_, E_, T_, G_, FC_, T2_ = 0, 2, 4, 6, 8, 10, 20, 22
    A2, B2, TA, TB = 24, 25, 26, 27
    def both(f):
        a, b = f(0), f(1)
        for x, y in zip(a, b): p(x); p(y)
    def unp(d, s, mu): return f"v_lshlrev_b32 v{d}, 16, v{s}" if mu == 0 else f"v_and_b32 v{d}, 0xffff0000, v{s}"
    both(lambda m: [unp(B[m]+A2, 102, m), f"v_mul_f32 v{B[m]+A2}, {fhex(LOG2E)}, v{B[m]+A2}", f"v_exp_f32 v{B[m]+A2}, v{B[m]+A2}",
                    unp(B[m]+B2, 103, m), f"v_cvt_pk_bf16_f32 v{B[m]+A2}, v{B[m]+A2}, v{B[m]+A2}", f"v_mul_f32 v{B[m]+B2}, v{B[m]+B2}, v106",
                    f"v_lshlrev_b32 v{B[m]+A2}, 16, v{B[m]+A2}", f"v_mul_f32 v{B[m]+B2}, 0.15915494, v{B[m]+B2}",
                    f"v_mul_f32 v{B[m]+A2}, v{B[m]+A2}, v106", unp(B[m]+G_, 104, m), f"v_mul_f32 v{B[m]+A2}, {fhex(-LOG2E)}, v{B[m]+A2}",
                    unp(B[m]+G_+1, 105, m)])
    for W, pw in ((W8_, 8.0), (W1_, 1.0), (W256_, 256.0)):
        both(lambda m: [f"v_mul_f32 v{B[m]+TB}, {fhex(pw)}, v{B[m]+B2}", f"v_mul_f32 v{B[m]+TA}, {fhex(pw)}, v{B[m]+A2}",
                        f"v_rndne_f32 v{B[m]+T_}, v{B[m]+TB}", f"v_exp_f32 v{B[m]+TA}, v{B[m]+TA}",
                        f"v_sub_f32 v{B[m]+TB}, v{B[m]+TB}, v{B[m]+T_}",
                        f"v_cos_f32 v{B[m]+W}, v{B[m]+TB}", f"v_sin_f32 v{B[m]+W+1}, v{B[m]+TB}",
                        f"v_mul_f32 v{B[m]+W}, v{B[m]+W}, v{B[m]+TA}", f"v_mul_f32 v{B[m]+W+1}, v{B[m]+W+1}, v{B[m]+TA}"])
    p(f"""s_mul_i32 s75, s{sWAVE}, {STG}
    v_lshlrev_b32 v108, 3, v1
    v_add_u32 v108, s75, v108""")
    rot = [0]
    def wr(rows, off, neg):
        c = 170 + 6*int(neg) + 2*(rot[0] % 3); rot[0] += 1
        o = [f"v_cvt_pk_bf16_f32 v{c+m}, v{B[m]+off}, {'-' if neg else ''}v{B[m]+off+1}" for m in range(2)]
        o += [f"ds_write_b64 v108, v[{c}:{c+1}] offset:{528*r}" for r in rows]
        return o
    POS = [[0,1,2,3,4,5,6,7,512,516,520,1024,1032,1280,1288],
           [256,256,258,260,260,260,262,264,768,772,776,1536,1544,1792,1800]]
    def frows(pos): return [32 + 8*(u >> 2) + 4*hd + (u & 3) for hd in range(2) for u, q in enumerate(POS[hd]) if q == pos]
    es = ["v_mov_b32 v182, 0x3f80", "v_mov_b32 v183, 0x3f80", "ds_write_b64 v108, v[182:183]"]
    es_steps = []
    es_steps.append(wr([1], W8_, False))
    src = W8_
    for j in range(2, 32):
        a = cmul(B[0]+E_, B[0]+src, B[0]+W8_, B[0]+T_); b = cmul(B[1]+E_, B[1]+src, B[1]+W8_, B[1]+T_)
        es_steps.append([a[0], b[0], a[1], b[1]] + wr([j], E_, False)); src = E_
    fs_steps = [wr(frows(0), G_, True)]
    src = G_
    for b_ in range(1, 9):
        dst = G_ + b_ if b_ % 2 == 0 else FC_
        a = cmul(B[0]+dst, B[0]+src, B[0]+W1_, B[0]+T2_); b = cmul(B[1]+dst, B[1]+src, B[1]+W1_, B[1]+T2_)
        fs_steps.append([a[0], b[0], a[1], b[1]] + (wr(frows(b_), dst, True) if b_ < 8 else [])); src = dst
    for base, es_ in ((256, (0,2,4,6,8)), (512, (0,4,8)), (768, (0,4,8)), (1024, (0,8)), (1280, (0,8)), (1536, (0,8)), (1792, (0,8))):
        for e in es_:
            g = G_ + e
            a = cmul(B[0]+g, B[0]+g, B[0]+W256_, B[0]+T2_); b = cmul(B[1]+g, B[1]+g, B[1]+W256_, B[1]+T2_)
            fs_steps.append([a[0], b[0], a[1], b[1]] + wr(frows(base+e), g, True))
    for x in es: p(x)
    n = max(len(es_steps), len(fs_steps))
    for k in range(n):
        a = es_steps[k] if k < len(es_steps) else []
        b = fs_steps[k] if k < len(fs_steps) else []
        m = max(len(a), len(b))
        for z in range(m):
            if z < len(a): p(a[z])
            if z < len(b): p(b[z])
    p(f"""v_and_b32 v109, 31, v1
    v_lshrrev_b32 v110, 5, v1
    v_mul_u32_u24 v111, 528, v109
    v_lshl_add_u32 v111, v110, 4, v111
    v_add_u32 v111, s75, v111
    s_mul_i32 s76, s{sWAVE}, {FTS}
    s_add_u32 s76, s76, {FT0}
    v_lshlrev_b32 v112, 4, v109
    v_add_u32 v112, s76, v112
    v_lshl_add_u32 v113, v110, 10, v112
    v_lshl_add_u32 v112, v110, 9, v112
    v_add_f32 v106, v106, v106
    v_and_b32 v114, 15, v1
    v_lshl_add_u32 v114, v114, 2, s76
    v_mov_b32 v115, 0
    ds_write_b32 v114, v115""")
    for ks in range(16):
        p(f"ds_read_b128 {ar(8*ks, 4)}, v111 offset:{32*528+32*ks}\nds_read_b128 {ar(8*ks+4, 4)}, v111 offset:{32*ks}")
        if ks >= 3:
            k = ks-3
            p(f"v_mfma_f32_32x32x16_bf16 v[116:131], {ar(8*k,4)}, {ar(8*k+4,4)}, {'0' if k == 0 else 'v[116:131]'}")
    for k in range(13, 16):
        p(f"v_mfma_f32_32x32x16_bf16 v[116:131], {ar(8*k,4)}, {ar(8*k+4,4)}, v[116:131]")
    p("s_mov_b32 s78, 0xaaaaaaaa\ns_mov_b32 s79, 0xaaaaaaaa")
    for u in range(0, 16, 2):
        p(f"v_pk_mul_f32 v[{116+u}:{117+u}], v[{116+u}:{117+u}], v[106:107] op_sel_hi:[1,0]")
    K = lambda u: f"v{116+u}"
    for z in range(4): p(f"v_cvt_pk_bf16_f32 v{132+z}, {K(2*z)}, {K(2*z+1)}")
    p("ds_write_b128 v112, v[132:135] offset:64")
    for z, (a, b) in enumerate(((8,8),(8,9),(9,9),(10,10))): p(f"v_cvt_pk_bf16_f32 v{136+z}, {K(a)}, {K(b)}")
    p("ds_write_b128 v112, v[136:139] offset:1088")
    for sl, (k0, o) in enumerate(((11, 2048+64), (13, 2560+64))):
        q = 140+4*sl
        p(f"""v_cndmask_b32 v148, {K(k0)}, {K(k0+1)}, s[78:79]
        v_cvt_pk_bf16_f32 v{q}, {K(k0)}, {K(k0)}
        v_cvt_pk_bf16_f32 v{q+1}, {K(k0)}, {K(k0)}
        v_cvt_pk_bf16_f32 v{q+2}, v148, {K(k0+1)}
        v_cvt_pk_bf16_f32 v{q+3}, {K(k0+1)}, {K(k0+1)}
        ds_write_b128 v113, v[{q}:{q+3}] offset:{o}""")

sA01, sGA = 80, 84
def conv_loads(p):
    p(f"""v_lshlrev_b32 v3, 4, v0
    s_lshl_b32 s77, s71, 15
    s_add_u32 s77, s77, {hex(XP)}
    v_lshrrev_b32 v4, 4, v1
    v_bfe_u32 v5, v1, 2, 2
    v_and_b32 v6, 3, v1
    v_mul_u32_u24 v4, 2560, v4
    v_mul_u32_u24 v5, 15360, v5
    v_lshl_add_u32 v4, v6, 2, v4
    v_add_u32 v4, v4, v5
    s_lshl_b32 s85, s71, 4
    s_add_u32 s85, s85, {hex(MODP)}
    buffer_load_dword v7, v4, {WS}, s85 offen {cfg.ld}""")
    for j in range(8):
        p(f"buffer_load_dwordx4 v[{8+4*j}:{11+4*j}], v3, {WS}, s77 offen {cfg.ld}")
        if j < 7: p("s_add_u32 s77, s77, 4096")

def conv_prep(p):
    p(f"""v_lshrrev_b32 v4, 4, v1
    v_cmp_eq_u32 vcc, 1, v4
    v_cndmask_b32 v4, 0, 1.0, vcc
    v_add_f32_dpp v7, v7, v7 row_ror:4 row_mask:0xf bank_mask:0xf
    v_add_f32_dpp v7, v7, v7 row_ror:8 row_mask:0xf bank_mask:0xf""")
    rbf1(p, 7, 7)
    p("v_add_f32 v7, v7, v4")
    rbf1(p, 7, 7)
    p(f"s_add_u32 s86, s{sWAVE}, 32")
    for ch in range(4): p(f"v_readlane_b32 s{sA01+ch}, v7, {16+ch}")
    for ch in range(4): p(f"v_readlane_b32 s{88+ch}, v7, {ch}")
    p(f"v_readlane_b32 s{sGA}, v7, s86")
    for ch in range(4): p(f"v_mov_b32 v{40+ch}, s{88+ch}")
    p(f"""s_mul_i32 s86, s{sWAVE}, 1152
    v_lshlrev_b32 v5, 4, v1
    v_add_u32 v5, s86, v5
    v_mov_b32 v44, 0
    v_mov_b32 v45, 0
    v_mov_b32 v46, 0
    v_mov_b32 v47, 0
    s_mov_b64 exec, 0x7f""")
    for ch in range(4): p(f"ds_write_b128 v5, v[44:47] offset:{HT+4608*ch}")
    p("s_mov_b64 exec, -1\ns_mov_b32 s86, 0x05040100\ns_mov_b32 s87, 0x07060302")
    Hh = 48
    for j in range(8):
        for h in range(2):
            s = 8+4*j+h; d = Hh+4*j+2*h
            p(f"v_lshlrev_b32 v{d}, 16, v{s}\nv_and_b32 v{d+1}, 0xffff0000, v{s}")
            p(f"v_pk_fma_f32 v[{d}:{d+1}], v[{d}:{d+1}], s[{sA01+2*h}:{sA01+2*h+1}], v[{40+2*h}:{41+2*h}]")
    for ch in range(4):
        q = 80+4*ch
        for z in range(4): p(f"v_cvt_pk_bf16_f32 v{q+z}, v{Hh+8*z+ch}, v{Hh+8*z+4+ch}")
        p(f"ds_write_b128 v5, v[{q}:{q+3}] offset:{HT+4608*ch+112}")
    for ch in range(4):
        q = 96+4*ch
        for z in range(4):
            p(f"v_perm_b32 v{q+z}, v{8+8*z+4+2+(ch>>1)}, v{8+8*z+2+(ch>>1)}, s{86+(ch&1)}")
        p(f"ds_write_b128 v5, v[{q}:{q+3}] offset:{XT+4608*ch+112}")

vAA, vBA, vHA, vEA, vI1, vI2, vZ = 8, 9, 10, 11, 12, 13, 14
def conv_addr(p):
    p(f"""v_lshrrev_b32 v20, 5, v1
    v_bfe_u32 v21, v1, 4, 1
    v_bfe_u32 v22, v1, 2, 2
    v_and_b32 v23, 1, v1
    v_bfe_u32 v24, v1, 1, 1
    v_and_b32 v25, 7, v1
    v_bfe_u32 v26, v1, 3, 1
    s_mul_i32 s76, s{sWAVE}, {FTS}
    s_add_u32 s76, s76, {FT0+96}
    v_lshlrev_b32 v27, 5, v23
    v_lshl_add_u32 v27, v21, 4, v27
    v_lshl_add_u32 v27, v24, 3, v27
    v_lshlrev_b32 v28, 6, v20
    v_lshl_add_u32 v28, v22, 3, v28
    v_sub_u32 v27, v27, v28
    v_add_u32 v{vAA}, s76, v27
    s_mul_i32 s76, s{sWAVE}, 4608
    v_lshl_add_u32 v27, v26, 1, v21
    v_mul_u32_u24 v27, 1152, v27
    v_add_u32 v28, v25, v20
    v_lshl_add_u32 v27, v28, 4, v27
    v_add_u32 v{vBA}, s76, v27
    v_lshrrev_b32 v27, 3, v1
    v_lshlrev_b32 v27, 1, v27
    v_lshl_add_u32 v27, v25, 4, v27
    s_add_u32 s76, s76, 112
    v_add_u32 v{vHA}, s76, v27
    v_and_b32 v27, 15, v1
    v_lshlrev_b32 v27, 4, v27
    v_lshl_add_u32 v27, v20, 8, v27
    v_lshl_add_u32 v27, v21, 3, v27
    s_lshl_b32 s76, s{sWAVE}, 1
    s_add_u32 s76, s76, {EXB}
    v_add_u32 v{vEA}, s76, v27
    v_add_u32 v27, 7, v1
    v_and_b32 v27, 7, v27
    v_lshl_add_u32 v27, v26, 3, v27
    v_add_u32 v27, 48, v27
    v_subrev_u32 v28, 16, v1
    v_cmp_gt_u32 vcc, 16, v1
    v_cndmask_b32 v27, v28, v27, vcc
    v_lshlrev_b32 v{vI1}, 2, v27
    v_or_b32 v{vI2}, 32, v{vI1}
    v_mov_b32 v{vZ}, 0
    s_mov_b32 s78, 0
    s_mov_b32 s79, 0x80800000""")

def conv_main(p):
    Dr = lambda X: 128+16*X
    Aa = lambda s: 128+4*s
    Ba = lambda w: 4*(w+3)
    def loads(X):
        o = []
        for z in range(4):
            s = 4*X+z; w = 4*X-z
            o += mk(f"ds_read_b128 {ar(Ba(w),4)}, v{vBA} offset:{32*(w+3)}")
            o += mk(f"ds_read_b64_tr_b16 {ar(Aa(s),2)}, v{vAA} offset:{128*s+32}\nds_read_b64_tr_b16 {ar(Aa(s)+2,2)}, v{vAA} offset:{128*s}")
        return o
    def post(X):
        r = Dr(X); T = 16+24*(X & 1)
        pv = (lambda k: f"v{Dr(X-1)+k}") if X else (lambda k: f"v{vZ}")
        o = []
        for c in range(4):
            o += mk(f"ds_read_u16_d16_hi v{T+c}, v{vHA} offset:{HT+1152*c+128*X}\nds_read_u16_d16_hi v{T+4+c}, v{vHA} offset:{XT+1152*c+128*X}")
        for a in (7,6,5,4,3,2,1,0): o += mk(f"v_permlane16_swap_b32 v{r+a}, v{r+a+8}")
        o += mk(f"v_cndmask_b32 v{T+8}, v{r+15}, {pv(15)}, s[78:79]\nds_bpermute_b32 v{T+8}, v{vI1}, v{T+8}")
        for a in (7,6): o += mk(f"v_add_f32 v{r+a}, v{r+a}, v{r+a+7}")
        o += mk(f"""v_cndmask_b32 v{T+9}, v{r+6}, {pv(6)}, s[78:79]
        v_cndmask_b32 v{T+10}, v{r+7}, {pv(7)}, s[78:79]
        ds_bpermute_b32 v{T+9}, v{vI2}, v{T+9}
        ds_bpermute_b32 v{T+10}, v{vI2}, v{T+10}""")
        for a in (5,4,3,2,1): o += mk(f"v_add_f32 v{r+a}, v{r+a}, v{r+a+7}")
        Y = T+12
        m = "row_ror:8 row_mask:0xf bank_mask:"
        o += mk(f"""v_add_f32 v{r}, v{r}, v{T+8}
        v_add_f32_dpp v{Y+3}, v{r+1}, v{r+3} {m}0xf
        v_add_f32 v{Y+1}, v{r+1}, v{T+10}
        v_add_f32 v{Y}, v{r}, v{T+9}
        v_add_f32_dpp v{Y+2}, v{r}, v{r+2} {m}0xf
        v_add_f32_dpp v{Y+3}, v{r+7}, v{r+5} {m}0xc
        v_add_f32_dpp v{Y+1}, v{r+5}, v{r+3} {m}0xc
        v_add_f32_dpp v{Y}, v{r+4}, v{r+2} {m}0xc
        v_add_f32_dpp v{Y+2}, v{r+6}, v{r+4} {m}0xc""")
        for c in (3,1,0,2): o += mk(f"v_fmac_f32 v{Y+c}, s{sDK}, v{T+c}")
        for c in (3,1,0,2): o += mk(f"v_fmac_f32 v{T+4+c}, s{sGA}, v{Y+c}")
        o += mk(f"""v_cvt_pk_bf16_f32 v{T+16}, v{T+4}, v{T+5}
        v_cvt_pk_bf16_f32 v{T+17}, v{T+6}, v{T+7}
        ds_write_b16 v{vEA}, v{T+16} offset:{2048*X}
        ds_write_b16_d16_hi v{vEA}, v{T+16} offset:{2048*X+512}
        ds_write_b16 v{vEA}, v{T+17} offset:{2048*X+1024}
        ds_write_b16_d16_hi v{vEA}, v{T+17} offset:{2048*X+1536}""")
        return o
    p.extend(loads(0))
    main = []; fill = []
    for X in range(8):
        if X < 7: fill.append((len(main), loads(X+1)))
        for s in range(4*X+4):
            c = '0' if s == 0 else vr(Dr(X), 16)
            main.append(mk(f"v_mfma_f32_32x32x16_bf16 {vr(Dr(X),16)}, {ar(Aa(s),4)}, {ar(Ba(4*X-s),4)}, {c}"))
        fill.append((len(main)+1, post(X)))
    out = []; q = []; credit = 0
    pend = sorted(fill, key=lambda x: x[0]); g0 = 0
    tile_start = {}
    k = 0
    for X in range(8):
        tile_start[k] = X; k += 4*X+4
    lq = []
    for g, grp in enumerate(main):
        if g in tile_start:
            out += lq; lq = []
        out += grp
        for (st, lst) in pend:
            if st == g:
                if lst[0].op == 'ds_read_b128': lq = list(lst)
                else: q += lst
        credit += 5.0
        while lq and credit >= 1: out.append(lq.pop(0)); credit -= 1
        while q and credit >= cost(q[0]): credit -= cost(q[0]); out.append(q.pop(0))
        if not q and not lq: credit = 0
    for (st, lst) in pend:
        if st >= len(main): q += lst
    out += q
    p.extend(out)

def conv_store(p):
    p(f"""v_lshlrev_b32 v3, 4, v0
    s_lshl_b32 s77, s71, 14
    s_add_u32 s77, s77, {hex(X2)}
    s_waitcnt lgkmcnt(0)
    s_barrier""")
    for k in range(4): p(f"ds_read_b128 v[{64+4*k}:{67+4*k}], v3 offset:{EXB+4096*k}")
    for k in range(4):
        p(f"buffer_store_dwordx4 v[{64+4*k}:{67+4*k}], v3, {WS}, s77 offen {cfg.st}")
        if k < 3: p("s_add_u32 s77, s77, 4096")

def w1h_loads(p):
    srd(p, RA, sW1, D*F*2)
    p(f"""v_and_b32 v3, 3, v0
    v_lshrrev_b32 v4, 2, v0
    s_lshl_b32 s72, s71, 2
    v_add_u32 v5, s72, v3
    v_mul_u32_u24 v6, 4682, v5
    v_lshrrev_b32 v6, 16, v6
    v_mul_u32_u24 v7, 14, v6
    v_sub_u32 v7, v5, v7
    v_cmp_eq_u32 s[72:73], 13, v7
    v_lshlrev_b32 v5, 4, v5
    v_lshlrev_b32 v6, 3, v6
    v_sub_u32 v5, v5, v6
    v_mul_u32_u24 v6, 34560, v4
    v_add_u32 v5, v5, v6
    s_mov_b32 s74, 0""")
    for i in range(10):
        p(f"buffer_load_dwordx4 v[{8+4*i}:{11+4*i}], v5, {R(RA)}, s74 offen")
        if i < 9: p("s_add_u32 s74, s74, 3456")

def w1h_compute(p):
    AS = 0; RED = 5120; WT = 8192
    p(f"""v_lshlrev_b32 v48, 4, v0
    v_min_u32 v48, {159*16}, v48
    s_mov_b32 s74, {hex(MODP+3*2560)}""")
    for k in range(4):
        p(f"buffer_load_dwordx4 v[{52+8*k}:{55+8*k}], v48, {WS}, s74 offen {cfg.ld}")
        p(f"buffer_load_dwordx4 v[{56+8*k}:{59+8*k}], v48, {WS}, s74 offen offset:2560 {cfg.ld}")
        if k < 3: p("s_add_u32 s74, s74, 15360")
    for z in range(0, 8, 2):
        p(f"v_pk_add_f32 v[{52+z}:{53+z}], v[{52+z}:{53+z}], v[{60+z}:{61+z}]\nv_pk_add_f32 v[{68+z}:{69+z}], v[{68+z}:{69+z}], v[{76+z}:{77+z}]")
        p(f"v_pk_add_f32 v[{52+z}:{53+z}], v[{52+z}:{53+z}], v[{68+z}:{69+z}]")
    for z in range(4):
        p(f"v_cvt_pk_bf16_f32 v60, v{52+z}, v{56+z}\nv_lshlrev_b32 v{65+2*z}, 16, v60\nv_and_b32 v61, 0xffff0000, v60\nv_add_f32 v61, 1.0, v61")
        rbf1(p, 64+2*z, 61)
    p(f"""v_lshlrev_b32 v48, 1, v48
    ds_write_b128 v48, v[64:67] offset:{AS}
    ds_write_b128 v48, v[68:71] offset:{AS+16}
    v_mul_u32_u24 v49, 80, v4
    s_waitcnt lgkmcnt(0)
    s_barrier""")
    for z in range(5): p(f"ds_read_b128 v[{52+4*z}:{55+4*z}], v49 offset:{AS+16*z}")
    Wp, U, V = 80, 160, 168
    for i in range(10):
        for h in range(4):
            s = 8+4*i+h; d = Wp+8*i+2*h; a = 52+2*i
            p(f"v_lshlrev_b32 v{d}, 16, v{s}\nv_and_b32 v{d+1}, 0xffff0000, v{s}")
            if i == 0: p(f"v_pk_mul_f32 v[{V+2*h}:{V+2*h+1}], v[{d}:{d+1}], v[{a}:{a+1}] op_sel:[0,1] op_sel_hi:[1,1]")
            else: p(f"v_pk_fma_f32 v[{V+2*h}:{V+2*h+1}], v[{d}:{d+1}], v[{a}:{a+1}], v[{V+2*h}:{V+2*h+1}] op_sel:[0,1,0] op_sel_hi:[1,1,1]")
            p(f"v_pk_mul_f32 v[{d}:{d+1}], v[{d}:{d+1}], v[{a}:{a+1}] op_sel_hi:[1,0]")
            if i == 1: p(f"v_pk_add_f32 v[{U+2*h}:{U+2*h+1}], v[{d}:{d+1}], v[{d-8}:{d-7}]")
            elif i > 1: p(f"v_pk_add_f32 v[{U+2*h}:{U+2*h+1}], v[{U+2*h}:{U+2*h+1}], v[{d}:{d+1}]")
    for k in range(8): p(f"v_permlane32_swap_b32 v{U+k}, v{V+k}")
    for k in range(8): p(f"v_add_f32 v{U+k}, v{U+k}, v{V+k}")
    for k in range(4): p(f"v_permlane16_swap_b32 v{U+k}, v{U+4+k}")
    for k in range(4): p(f"v_add_f32 v{U+k}, v{U+k}, v{U+4+k}")
    m = "row_ror:8 row_mask:0xf bank_mask:"
    p(f"""v_add_f32_dpp v{V}, v{U}, v{U} {m}0x3
    v_add_f32_dpp v{V+1}, v{U+1}, v{U+1} {m}0x3
    v_add_f32_dpp v{V}, v{U+2}, v{U+2} {m}0xc
    v_add_f32_dpp v{V+1}, v{U+3}, v{U+3} {m}0xc
    v_lshrrev_b32 v50, 5, v1
    v_lshlrev_b32 v50, 2, v50
    v_add_u32 v50, v50, v3
    v_lshlrev_b32 v50, 2, v50
    v_bfe_u32 v51, v1, 3, 2
    v_add_u32 v50, v50, v51
    v_lshlrev_b32 v50, 6, v50
    v_bfe_u32 v51, v1, 2, 1
    v_lshl_add_u32 v50, v51, 2, v50
    s_lshl_b32 s74, s{sWAVE}, 3
    v_add_u32 v50, s74, v50
    ds_write_b32 v50, v{V} offset:{RED}
    ds_write_b32 v50, v{V+1} offset:{RED+32}
    v_lshlrev_b32 v50, 5, v1
    s_waitcnt lgkmcnt(0)
    s_barrier
    ds_read_b128 v[52:55], v50 offset:{RED}
    ds_read_b128 v[56:59], v50 offset:{RED+16}
    v_pk_add_f32 v[52:53], v[52:53], v[54:55]
    v_pk_add_f32 v[56:57], v[56:57], v[58:59]
    v_pk_add_f32 v[52:53], v[52:53], v[56:57]
    v_add_f32 v52, v52, v53
    v_mul_f32 v53, {fhex(-LOG2E)}, v52
    v_mul_f32 v52, {fhex(-1/640)}, v52
    v_lshlrev_b32 v50, 5, v3""")
    for e in range(8):
        p(f"v_add_u32 v51, {4*e}, v50\nds_bpermute_b32 v{U+e}, v51, v52")
    p(f"""v_lshlrev_b32 v51, 2, v1
    s_lshl_b32 s74, s71, 7
    s_add_u32 s74, s74, {hex(VV-128)}
    s_cmp_eq_u32 s{sWAVE}, 0
    s_cselect_b32 s74, s74, 0x7f000000
    s_mov_b32 exec_lo, 0
    buffer_store_dword v53, v51, {WS}, s74 offen {cfg.st}
    s_mov_b32 exec_lo, -1
    v_mul_u32_u24 v49, 640, v4
    v_lshl_add_u32 v49, v3, 4, v49
    v_mov_b32 v60, 0x3f80
    v_mov_b32 v61, 0""")
    for i in range(10):
        q = 64+4*(i & 3)
        for h in range(4):
            d = Wp+8*i+2*h
            p(f"v_pk_add_f32 v[{d}:{d+1}], v[{d}:{d+1}], v[{U+2*h}:{U+2*h+1}]\nv_cvt_pk_bf16_f32 v{q+h}, v{d}, v{d+1}")
        p(f"v_cndmask_b32 v{q+2}, v{q+2}, v60, s[72:73]\nv_cndmask_b32 v{q+3}, v{q+3}, v61, s[72:73]")
        p(f"ds_write_b128 v49, v[{q}:{q+3}] offset:{WT+64*i}")
    p(f"""v_lshrrev_b32 v50, 4, v1
    v_bfe_u32 v51, v1, 2, 2
    v_lshl_add_u32 v50, v50, 3, v51
    v_lshlrev_b32 v50, 6, v50
    v_lshl_add_u32 v50, v3, 3, v50
    s_mul_i32 s74, s{sWAVE}, {5*2048}
    v_add_u32 v50, s74, v50
    v_lshlrev_b32 v51, 4, v1""")
    for tt in range(2):
        p(f"""s_lshl_b32 s75, s71, 1
        s_add_u32 s75, s75, {tt}
        s_mul_i32 s76, s75, 9363
        s_lshr_b32 s76, s76, 16
        s_mul_i32 s77, s76, 133
        s_add_u32 s75, s75, s77
        s_mul_i32 s76, s{sWAVE}, 35
        s_add_u32 s75, s75, s76
        s_lshl_b32 s75, s75, 10
        s_add_u32 s{78+tt}, s75, {hex(W1F)}""")
    p("s_waitcnt lgkmcnt(0)\ns_barrier")
    for k in range(5):
        for tt in range(2):
            q = 80+8*k+4*tt
            p(f"ds_read_b64_tr_b16 v[{q}:{q+1}], v50 offset:{WT+2048*k+32*tt}\nds_read_b64_tr_b16 v[{q+2}:{q+3}], v50 offset:{WT+2048*k+32*tt+256}")
    for k in range(5):
        for tt in range(2):
            q = 80+8*k+4*tt
            p(f"buffer_store_dwordx4 v[{q}:{q+3}], v51, {WS}, s{78+tt} offen {cfg.st}")
            if k < 4: p(f"s_add_u32 s{78+tt}, s{78+tt}, 7168")

def w2h(p):
    srd(p, RA, sW2, F*D*2)
    p(f"""s_lshr_b32 s72, s{sWAVE}, 1
    s_lshl_b32 s73, s71, 1
    s_add_u32 s72, s72, s73
    s_and_b32 s73, s{sWAVE}, 1
    s_mul_i32 s74, s72, 9363
    s_lshr_b32 s74, s74, 16
    s_mul_i32 s75, s74, 7
    s_sub_u32 s75, s72, s75
    s_lshl_b32 s74, s74, 1
    s_cmp_ge_u32 s75, 3
    s_cselect_b32 s76, 1, 0
    s_cselect_b32 s77, 3, 0
    s_sub_u32 s77, s75, s77
    s_lshl_b32 s77, s77, 1
    s_add_u32 s77, s77, s73
    s_cmp_eq_u32 s75, 6
    s_cselect_b32 s76, s73, s76
    s_cselect_b32 s77, 6, s77
    s_add_u32 s74, s74, s76
    s_mul_i32 s74, s74, 108
    s_lshl_b32 s76, s77, 4
    s_add_u32 s74, s74, s76
    s_mul_i32 s74, s74, 1280
    s_mul_i32 s76, s{sWAVE}, 20480
    s_mov_b32 m0, s76
    v_lshlrev_b32 v3, 4, v1""")
    for q in range(4):
        if q == 3: p("s_cmp_eq_u32 s77, 6\ns_cselect_b32 s74, 0x7f000000, s74")
        for i in range(5):
            p(f"buffer_load_dwordx4 v3, {R(RA)}, s74 offen lds\ns_add_u32 m0, m0, 1024\ns_add_u32 s74, s74, 1024")
    p(f"""v_lshrrev_b32 v4, 4, v1
    v_bfe_u32 v5, v1, 2, 2
    v_and_b32 v6, 3, v1
    v_mul_u32_u24 v4, 5120, v4
    v_mul_u32_u24 v5, 1280, v5
    v_add_u32 v4, v4, v5
    s_lshr_b32 s75, s{sWAVE}, 1
    s_mul_i32 s75, s75, 40960
    s_mul_i32 s76, s73, 640
    s_add_u32 s75, s75, s76
    v_add_u32 v4, s75, v4
    v_lshl_add_u32 v5, v6, 3, v4
    v_lshl_add_u32 v4, v6, 4, v4
    s_mul_i32 s75, s73, {4*286720}
    s_mul_i32 s76, s72, 5120
    s_add_u32 s75, s75, s76
    s_add_u32 s75, s75, {hex(W2F)}
    s_waitcnt vmcnt(0)
    s_barrier""")
    for cb in range(4):
        for nt in range(5):
            q = 8+20*cb+4*nt
            va = 4 if nt < 4 else 5
            off = 160*cb + (64*(nt >> 1) + 8*(nt & 1) if nt < 4 else 128)
            p(f"ds_read_b64_tr_b16 v[{q}:{q+1}], v{va} offset:{off}\nds_read_b64_tr_b16 v[{q+2}:{q+3}], v{va} offset:{off+20480}")
    for cb in range(4):
        for nt in range(5):
            q = 8+20*cb+4*nt
            if nt < 4: p(f"buffer_store_dwordx4 v[{q}:{q+3}], v3, {WS}, s75 offen offset:{1024*nt} {cfg.st}")
            else: p(f"s_add_u32 s76, s75, 4096\nbuffer_store_dwordx4 v[{q}:{q+3}], v3, {WS}, s76 offen {cfg.st}")
        if cb < 3: p("s_add_u32 s75, s75, 286720")

def gbh(p):
    p(f"""v_lshlrev_b32 v48, 4, v0
    v_min_u32 v48, {159*16}, v48
    s_mov_b32 s74, {hex(MODP+5*2560)}""")
    for k in range(4):
        p(f"buffer_load_dwordx4 v[{52+4*k}:{55+4*k}], v48, {WS}, s74 offen {cfg.ld}")
        if k < 3: p("s_add_u32 s74, s74, 15360")
    for z in range(4):
        p(f"v_add_f32 v{52+z}, v{52+z}, v{56+z}\nv_add_f32 v{60+z}, v{60+z}, v{64+z}\nv_add_f32 v{52+z}, v{52+z}, v{60+z}")
        rbf1(p, 52+z, 52+z)
        p(f"v_mul_f32 v{52+z}, {fhex(-LN2)}, v{52+z}")
    p(f"s_mov_b32 s74, {hex(GB)}\nbuffer_store_dwordx4 v[52:55], v48, {WS}, s74 offen {cfg.st}")

sRB, sCB = 63, 64
VVL = 143360
def g1_ids(p):
    p(f"""s_lshr_b32 s{sRB}, s{sXCD}, 1
    s_lshl_b32 s{sRB}, s{sRB}, 2
    s_lshr_b32 s65, s{sI}, 3
    s_add_u32 s{sRB}, s{sRB}, s65
    s_and_b32 s{sCB}, s{sXCD}, 1
    s_lshl_b32 s{sCB}, s{sCB}, 3
    s_and_b32 s65, s{sI}, 7
    s_add_u32 s{sCB}, s{sCB}, s65""")
def g1_wload(p):
    p(f"""s_mul_i32 s65, s{sCB}, 143360
    s_lshl_b32 s66, s{sWAVE}, 10
    s_add_u32 s65, s65, s66
    s_add_u32 s65, s65, {hex(W1F)}
    s_mov_b32 m0, s66
    v_lshlrev_b32 v3, 4, v1
    v_lshlrev_b32 v4, 2, v1""")
    for n in range(35):
        p(f"buffer_load_dwordx4 v3, {WS}, s65 offen {cfg.ld} lds")
        if n < 34: p("s_add_u32 m0, m0, 4096\ns_add_u32 s65, s65, 4096")
    p(f"""s_mul_i32 s65, s{sCB}, 448
    s_and_b32 s66, s{sWAVE}, 1
    s_lshl_b32 s66, s66, 8
    s_add_u32 s65, s65, s66
    s_add_u32 s65, s65, {hex(VV)}
    s_add_u32 m0, s66, {VVL}""")
    p(f"buffer_load_dword v4, {WS}, s65 offen {cfg.ld} lds", ('tok', 'w1'))
Bf = lambda ks, mt: 96+8*ks+4*mt
def g1_xload(p):
    p(f"""v_lshrrev_b32 v5, 4, v1
    v_and_b32 v6, 15, v1
    v_lshlrev_b32 v7, 15, v5
    v_lshl_add_u32 v7, v6, 4, v7
    s_lshl_b32 s65, s{sRB}, 2
    s_add_u32 s65, s65, s{sWAVE}
    s_lshl_b32 s65, s65, 8
    s_add_u32 s65, s65, {hex(X2)}
    s_add_u32 s66, s65, 16384""")
    for ks in range(20):
        p(f"buffer_load_dwordx4 {vr(Bf(ks,0),4)}, v7, {WS}, s65 offen {cfg.ld}\nbuffer_load_dwordx4 {vr(Bf(ks,1),4)}, v7, {WS}, s66 offen {cfg.ld}")
        if ks < 19: p("s_add_u32 s65, s65, 0x20000\ns_add_u32 s66, s66, 0x20000")
def g1_main(p, groups=((6,0,1),(2,3),(4,5))):
    Dm = lambda ft, mt: 32+4*(2*ft+mt)
    Sm = lambda mt: 88+4*mt
    p(f"""v_and_b32 v8, 3, v6
    v_cmp_eq_u32 s[68:69], 1, v8
    v_cmp_eq_u32 s[70:71], 2, v8
    v_cmp_eq_u32 s[72:73], 3, v8
    v_lshrrev_b32 v8, 2, v6
    v_lshl_add_u32 v8, v8, 4, v6
    v_lshlrev_b32 v8, 2, v8
    v_add_u32 v9, 48, v6
    v_lshlrev_b32 v9, 2, v9
    v_lshlrev_b32 v10, 4, v5
    v_add_u32 v10, {VVL}, v10
    v_add_u32 v4, 0xe000, v3
    v_add_u32 v5, 0x1c000, v3
    s_lshl_b32 s65, s{sRB}, 3
    s_lshl_b32 s66, s{sWAVE}, 1
    s_add_u32 s65, s65, s66
    s_mul_i32 s65, s65, 56
    s_lshr_b32 s66, s{sCB}, 1
    s_mul_i32 s66, s66, 7
    s_add_u32 s65, s65, s66
    s_and_b32 s66, s{sCB}, 1
    s_lshl_b32 s67, s66, 3
    s_mul_i32 s66, s66, 3
    s_add_u32 s74, s65, s66
    s_lshl_b32 s74, s74, 10
    s_add_u32 s74, s74, {hex(H1)}
    s_add_u32 s75, s74, {56*1024}
    s_add_u32 s76, s65, 6
    s_lshl_b32 s76, s76, 10
    s_add_u32 s76, s76, s67
    s_add_u32 s76, s76, {hex(H1)}
    s_add_u32 s77, s76, {56*1024}""")
    p("s_nop 0", ('waitvm', 'w1'))
    stamp(p, 2)
    p("s_barrier")
    stamp(p, 3)
    def wread(ks, ft, slot):
        n = 7*ks+ft; b = n // 56
        return mk(f"ds_read_b128 {ar(4*slot,4)}, v{(3,4,5)[b]} offset:{1024*(n-56*b)}")
    def stats():
        o = []
        for mt in range(2):
            s = Sm(mt); t = 12+mt; u = 14+mt
            o += mk(f"""v_cndmask_b32 v{t}, v{s}, v{s+1}, s[68:69]
            v_cndmask_b32 v{t}, v{t}, v{s+2}, s[70:71]
            v_cndmask_b32 v{t}, v{t}, v{s+3}, s[72:73]
            ds_bpermute_b32 v{u}, v9, v{Dm(6,mt)}
            ds_bpermute_b32 v{t}, v8, v{t}""")
        for x in ("v_mul_f32 v{u}, %s, v{u}" % fhex(1/640), "v_mul_f32 v{t}, %s, v{t}" % fhex(1/640), "v_fma_f32 v{t}, -v{u}, v{u}, v{t}",
                  "v_max_f32 v{t}, 0, v{t}", "v_cvt_pk_bf16_f32 v{t}, v{t}, v{t}", "v_lshlrev_b32 v{t}, 16, v{t}", "v_add_f32 v{t}, %s, v{t}" % fhex(1e-5),
                  "v_cvt_pk_bf16_f32 v{t}, v{t}, v{t}", "v_lshlrev_b32 v{t}, 16, v{t}", "v_sqrt_f32 v{t}, v{t}", "v_cvt_pk_bf16_f32 v{t}, v{t}, v{t}",
                  "v_lshlrev_b32 v{t}, 16, v{t}", "v_rcp_f32 v{t}, v{t}", "v_mul_f32 v{t}, %s, v{t}" % fhex(-LOG2E)):
            for mt in range(2): o += mk(x.format(t=12+mt, u=14+mt))
        return o
    def epi(ft):
        o = mk(f"ds_read_b128 v[16:19], v10 offset:{64*ft}")
        for mt in range(2):
            d = Dm(ft, mt); base = Dm(ft & ~1, mt) if ft < 6 else d
            for r in range(4): o += mk(f"v_fma_f32 v{d+r}, v{d+r}, v{12+mt}, v{16+r}")
            T = 20+4*mt
            for r in range(4): o += mk(f"v_exp_f32 v{T+r}, v{d+r}")
            for r in range(4): o += mk(f"v_add_f32 v{T+r}, 1.0, v{T+r}")
            for r in range(4): o += mk(f"v_rcp_f32 v{T+r}, v{T+r}")
            for r in range(4): o += mk(f"v_mul_f32 v{d+r}, v{d+r}, v{T+r}")
            k = 2*(ft & 1) if ft < 6 else 0
            o += mk(f"v_cvt_pk_bf16_f32 v{base+k}, v{d}, v{d+1}\nv_cvt_pk_bf16_f32 v{base+k+1}, v{d+2}, v{d+3}")
            if ft == 6: o += mk(f"buffer_store_dwordx2 {vr(base,2)}, v3, {WS}, s{76+mt} offen {cfg.st}")
            elif ft & 1: o += mk(f"buffer_store_dwordx4 {vr(base,4)}, v3, {WS}, s{74+mt} offen offset:{1024*(ft>>1)} {cfg.st}")
        return o
    main = []; fill = []; rates = []
    NS = 16; seq = [(g, ks, ft) for g, grp in enumerate(groups) for ks in range(20) for ft in grp]
    AH = 6
    pre = []
    for z in range(AH): pre += wread(seq[z][1], seq[z][2], z % NS)
    p.extend(pre)
    for z, (g, ks, ft) in enumerate(seq):
        first = ft == groups[g][0]
        grp = []
        if g == 0 and first:
            grp += mk(f"v_swap_b32 v{Bf(ks,0)+2}, v{Bf(ks,1)}\nv_swap_b32 v{Bf(ks,0)+3}, v{Bf(ks,1)+1}")
        if g > 0 and ks == 0 and first:
            lst = []
            if g == 1: lst += stats()
            for f2 in groups[g-1]: lst += epi(f2)
            fill.append((len(main)+2, lst))
        for mt in range(2):
            c = '0' if ks == 0 else vr(Dm(ft, mt), 4)
            ins = mk(f"v_mfma_f32_16x16x32_bf16 {vr(Dm(ft,mt),4)}, {ar(4*(z % NS),4)}, {vr(Bf(ks,mt),4)}, {c}")
            has = mt == 0 and z+AH < len(seq)
            if has: ins += wread(seq[z+AH][1], seq[z+AH][2], (z+AH) % NS)
            main.append(grp+ins); grp = []; rates.append(1.0 if has else 2.0)
        if g == 0 and ft == groups[0][-1]:
            for mt in range(2):
                c = '0' if ks == 0 else vr(Sm(mt), 4)
                main.append(mk(f"v_mfma_f32_16x16x32_bf16 {vr(Sm(mt),4)}, {vr(Bf(ks,mt),4)}, {vr(Bf(ks,mt),4)}, {c}")); rates.append(2.0)
    lst = []
    for f2 in groups[-1]: lst += epi(f2)
    fill.append((len(main), lst))
    p.extend(interleave(main, fill, lambda g: rates[g]*1.5))

sRB2, sCB2 = 63, 64
def W2r(k, nt):
    z = 5*k+nt
    return ar(4*z, 4) if z < 64 else vr(232+4*(z-64), 4)
def g2_ids(p):
    p(f"""s_lshl_b32 s{sRB2}, s{sXCD}, 2
    s_lshr_b32 s65, s{sI}, 3
    s_add_u32 s{sRB2}, s{sRB2}, s65
    s_and_b32 s{sCB2}, s{sI}, 7""")
def g2_wload(p):
    p(f"""s_mul_i32 s65, s{sCB2}, 286720
    s_mul_i32 s66, s{sWAVE}, {14*5120}
    s_add_u32 s65, s65, s66
    s_add_u32 s65, s65, {hex(W2F)}
    v_lshlrev_b32 v3, 4, v1""")
    for z in range(70):
        p(f"buffer_load_dwordx4 {W2r(z//5, z%5)}, v3, {WS}, s65 offen offset:{1024*(z%4)} {cfg.ld}")
        if z % 4 == 3: p("s_add_u32 s65, s65, 4096")
RING = 28
Hr = lambda z: 120+4*(z % RING)
def g2_hload(z):
    i, k = divmod(z, 14)
    o = []
    if k % 4 == 0 and k: o += mk(f"s_add_u32 s{66+i}, s{66+i}, 4096")
    o += mk(f"buffer_load_dwordx4 {vr(Hr(z),4)}, v3, {WS}, s{66+i} offen offset:{1024*(k%4)} {cfg.ld}")
    return o
def g2_hids(p):
    for i in range(4):
        p(f"""s_add_u32 s70, s{sWAVE}, {i+1}
        s_and_b32 s70, s70, 3
        s_mul_i32 s{72+i}, s70, 15360
        s_lshl_b32 s71, s{sRB2}, 2
        s_add_u32 s70, s70, s71
        s_mul_i32 s70, s70, 56
        s_mul_i32 s71, s{sWAVE}, 14
        s_add_u32 s70, s70, s71
        s_lshl_b32 s70, s70, 10
        s_add_u32 s{66+i}, s70, {hex(H1)}""")
def g2_main(p):
    acc = lambda i, nt: 40+20*(i & 1)+4*nt
    Pp, Q1, Q2 = 80, 100, 40
    srd(p, RA, sOUT, L*D*2)
    for z in range(RING): p.extend(g2_hload(z))
    p(f"""v_lshrrev_b32 v5, 4, v1
    v_and_b32 v6, 15, v1
    v_add_u32 v7, s72, v3
    v_add_u32 v8, s73, v3
    v_add_u32 v9, s74, v3
    v_add_u32 v4, s75, v3""")
    def epi_loads():
        o = mk(f"""v_lshlrev_b32 v80, 4, v6
        v_lshl_add_u32 v81, v5, 14, v80
        v_lshl_add_u32 v80, v5, 15, v80
        s_mul_i32 s76, s{sCB2}, {20*16384}
        s_lshl_b32 s77, s{sRB2}, 1
        s_lshr_b32 s78, s{sWAVE}, 1
        s_add_u32 s77, s77, s78
        s_lshl_b32 s77, s77, 8
        s_add_u32 s76, s76, s77
        s_and_b32 s78, s{sWAVE}, 1
        s_lshl_b32 s78, s78, 3
        s_add_u32 s76, s76, s78
        s_add_u32 s76, s76, {hex(X2)}""")
        for nt in range(5):
            g = 8*(nt >> 1)+(nt & 1) if nt < 4 else 16
            o += mk(f"s_add_u32 s77, s76, {g*16384}\nbuffer_load_dwordx2 {vr(10+2*nt,2)}, v{80 if nt < 4 else 81}, {WS}, s77 offen {cfg.ld}")
        o += mk(f"""v_lshlrev_b32 v80, 5, v5
        v_lshlrev_b32 v81, 4, v5
        s_mul_i32 s76, s{sCB2}, 320
        s_add_u32 s76, s76, {hex(GB)}""")
        for nt in range(5):
            off = 128*(nt >> 1)+16*(nt & 1) if nt < 4 else 256
            o += mk(f"buffer_load_dwordx4 {vr(20+4*nt,4)}, v{80 if nt < 4 else 81}, {WS}, s76 offen offset:{off} {cfg.ld}")
        return o
    main = []; fill = []; rates = []
    for z in range(56):
        i, k = divmod(z, 14)
        if k == 0 and i > 0:
            lst = []
            for nt in range(5): lst += mk(f"ds_write_b128 v{7+i-1}, {vr(acc(i-1,nt),4)} offset:{(i-1)*5120+1024*nt}")
            if i == 3:
                lst += mk("s_waitcnt lgkmcnt(0)\ns_barrier")
                for s_, q in enumerate((Pp, Q1, Q2)):
                    for nt in range(5): lst += mk(f"ds_read_b128 {vr(q+4*nt,4)}, v4 offset:{s_*5120+1024*nt}")
                for x in range(20): lst += mk(f"v_add_f32 v{Pp+x}, v{Pp+x}, v{Q1+x}")
                for x in range(20): lst += mk(f"v_add_f32 v{Pp+x}, v{Pp+x}, v{Q2+x}")
                for nt in range(5):
                    for h in range(2):
                        lst += mk(f"v_lshlrev_b32 v{Q1+4*nt+2*h}, 16, v{10+2*nt+h}\nv_and_b32 v{Q1+4*nt+2*h+1}, 0xffff0000, v{10+2*nt+h}")
                for x in range(20): lst += mk(f"v_fmac_f32 v{Q1+x}, v{20+x}, v{Pp+x}")
                lst += mk(f"""v_and_b32 v7, 7, v6
                v_lshrrev_b32 v8, 3, v6
                v_lshlrev_b32 v7, 5, v7
                v_lshl_add_u32 v7, v8, 2, v7
                v_mul_u32_u24 v7, 1280, v7
                v_lshl_add_u32 v8, v5, 3, v7
                v_lshl_add_u32 v7, v5, 4, v7
                s_lshr_b32 s76, s{sRB2}, 2
                s_lshl_b32 s76, s76, 8
                s_and_b32 s77, s{sRB2}, 3
                s_add_u32 s76, s76, s77
                s_lshl_b32 s77, s{sWAVE}, 3
                s_add_u32 s76, s76, s77
                s_mul_i32 s76, s76, 1280
                s_mul_i32 s77, s{sCB2}, 160
                s_add_u32 s76, s76, s77""")
            fill.append((len(main)+2, lst))
        for nt in range(5):
            c = '0' if k == 0 else vr(acc(i, nt), 4)
            ins = mk(f"v_mfma_f32_16x16x32_bf16 {vr(acc(i,nt),4)}, {W2r(k,nt)}, {vr(Hr(z),4)}, {c}")
            r = 2.0
            if nt == 4 and z+RING < 56: ins += g2_hload(z+RING); r = 0.5
            if nt == 4 and z+RING == 56: fill.append((len(main)+1, epi_loads()))
            main.append(ins); rates.append(r)
    if STAMPS: p(f"v_mov_b32 v0, v{Hr(0)}"); stamp(p, 2)
    p.extend(interleave(main, fill, lambda g: rates[g]))
    stamp(p, 3)
    for x in range(20): p(f"v_fmac_f32 v{Q1+x}, v{20+x}, v{acc(3,0)+x}")
    for z in range(10): p(f"v_cvt_pk_bf16_f32 v{Pp+z}, v{Q1+2*z}, v{Q1+2*z+1}")
    p(f"""buffer_store_dwordx4 {vr(Pp,4)}, v7, {R(RA)}, s76 offen
    buffer_store_dwordx4 {vr(Pp+4,4)}, v7, {R(RA)}, s76 offen offset:64
    buffer_store_dwordx2 {vr(Pp+8,2)}, v8, {R(RA)}, s76 offen offset:128""")

STAMP = 0x60000
STAMPS = os.environ.get('STAMPS')
class St: n = 0
def stamp(p, k):
    if STAMPS: p(f"{'s_memtime' if STAMPS=='cyc' else 's_memrealtime'} s[100:101]\ns_waitcnt lgkmcnt(0)\nv_writelane_b32 v2, s100, {k}")
def stamp_init(p):
    if STAMPS: p("v_mov_b32 v2, 0")
def stamp_out(p, base):
    if STAMPS: p(f"""s_lshl_b32 s100, s2, 2
    s_add_u32 s100, s100, s{sWAVE}
    s_lshl_b32 s100, s100, 8
    s_add_u32 s100, s100, {hex(STAMP+base*64)}
    v_lshlrev_b32 v1, 2, v1
    s_mov_b64 exec, 0xffff
    buffer_store_dword v2, v1, {WS}, s100 offen""")
DBGOUT = os.environ.get('DBGOUT')
def dbg_out(p):
    if not DBGOUT: return
    a, b = [int(x) for x in DBGOUT.split(',')]
    srd(p, RA, sDBG, 256)
    p(f"""v_readlane_b32 s100, v2, 0
    s_mov_b64 exec, -1
    v_subrev_u32 v2, s100, v2
    v_and_b32 v1, 63, v0
    v_lshlrev_b32 v1, 2, v1
    s_mov_b32 s101, 0x1000
    s_cmp_eq_u32 s2, {a}
    s_cselect_b32 s101, 0, s101
    s_cmp_eq_u32 s2, {b}
    s_cselect_b32 s101, 32, s101
    s_cmp_eq_u32 s{sWAVE}, 0
    s_cselect_b32 s101, s101, 0x1000
    s_mov_b64 exec, 0xff
    buffer_store_dword v2, v1, {R(RA)}, s101 offen""")
def kernel_text(name, segs):
    s = f".p2align 8\n.globl {name}\n.type {name},@function\n{name}:\n"
    for sg in segs: s += text(finalize(sg.ins))
    return s
def kd(name, vg=512, sg=102):
    return f""".p2align 6
.amdhsa_kernel {name}
  .amdhsa_next_free_vgpr {vg}
  .amdhsa_next_free_sgpr {sg}
  .amdhsa_accum_offset 256
  .amdhsa_group_segment_fixed_size 0
  .amdhsa_kernarg_size 120
  .amdhsa_user_sgpr_count 2
  .amdhsa_user_sgpr_kernarg_segment_ptr 1
  .amdhsa_system_sgpr_workgroup_id_x 1
.end_amdhsa_kernel
"""
def roles2(p, lab):
    p(f"""s_cmp_lt_u32 s{sI}, 20
    s_cbranch_scc1 {lab}_conv
    s_cmp_lt_u32 s{sI}, 27
    s_cbranch_scc1 {lab}_w1
    s_sub_u32 s71, s{sI}, 27
    s_lshl_b32 s71, s71, 3
    s_add_u32 s71, s71, s{sXCD}
    s_cmp_lt_u32 s71, 28
    s_cbranch_scc1 {lab}_w2
    s_cmp_eq_u32 s71, 28
    s_cbranch_scc0 {lab}_end""")

import os
DEBUG = os.environ.get('DEBUG')
def dump_lds(p):
    p(f"v_lshlrev_b32 v64, 4, v0\ns_lshl_b32 s90, s71, 16\ns_add_u32 s90, s90, {hex(H1)}\nv_add_u32 v65, {FT0}, v64")
    for k in range(9):
        p(f"ds_read_b128 v[68:71], v64 offset:{4096*k}\nbuffer_store_dwordx4 v[68:71], v64, {WS}, s90 offen\ns_add_u32 s90, s90, 4096\ns_waitcnt vmcnt(0)")
    for k in range(5):
        p(f"ds_read_b128 v[68:71], v65 offset:{4096*k}\nbuffer_store_dwordx4 v[68:71], v64, {WS}, s90 offen\ns_add_u32 s90, s90, 4096\ns_waitcnt vmcnt(0)")
def multi():
    out = ""
    for k in range(1, 5): out += f"; @launch kernel=k{k}_kernel grid=(256,1,1) block=(256,1,1) lds=163840\n"
    out += '.amdgcn_target "amdgcn-amd-amdhsa--gfx950"\n.text\n'
    def fin(p, k, n):
        stamp(p, n)
        if STAMPS: p("s_waitcnt vmcnt(0)")
        stamp(p, n+1); stamp_out(p, k)
    p = Prog(); preamble(p, 'k1'); stamp_init(p); stamp(p, 0); phase1_loads(p); stamp(p, 1)
    if STAMPS: p("s_waitcnt vmcnt(10)"); stamp(p, 2); p("s_waitcnt vmcnt(0)"); stamp(p, 3)
    phase1_compute(p); fin(p, 0, 4); dbg_out(p); p("k1_end:\ns_endpgm")
    out += kernel_text('k1_kernel', [p])
    p0 = Prog(); preamble(p0, 'k2'); stamp_init(p0); stamp(p0, 0); roles2(p0, 'k2')
    pg = Prog(); gbh(pg); fin(pg, 1, 7); pg("s_endpgm\nk2_w2:")
    p2 = Prog(); w2h(p2); fin(p2, 1, 7); p2("s_endpgm\nk2_w1:")
    p1 = Prog(); p1(f"s_mul_i32 s71, s{sXCD}, 7\ns_add_u32 s71, s71, s{sI}\ns_sub_u32 s71, s71, 20"); w1h_loads(p1); w1h_compute(p1); fin(p1, 1, 7); p1("s_endpgm\nk2_conv:")
    pc = Prog(); pc(f"s_mul_i32 s71, s{sXCD}, 20\ns_add_u32 s71, s71, s{sI}")
    kgen_loads(pc); conv_loads(pc); stamp(pc, 1)
    if STAMPS: pc("s_waitcnt vmcnt(9)")
    stamp(pc, 2); kgen_compute(pc); stamp(pc, 3); pc("s_waitcnt lgkmcnt(0)\ns_barrier"); conv_prep(pc); conv_addr(pc)
    pc("s_waitcnt lgkmcnt(0)\ns_barrier"); stamp(pc, 4)
    if DEBUG: dump_lds(pc)
    conv_main(pc); stamp(pc, 5); conv_store(pc); fin(pc, 1, 7); pc("k2_end:\ns_endpgm")
    out += kernel_text('k2_kernel', [p0, pg, p2, p1, pc])
    p = Prog(); preamble(p, 'k3'); stamp_init(p); stamp(p, 0); g1_ids(p); g1_wload(p); g1_xload(p); stamp(p, 1); g1_main(p); fin(p, 2, 7); p("k3_end:\ns_endpgm")
    out += kernel_text('k3_kernel', [p])
    p = Prog(); preamble(p, 'k4'); stamp_init(p); stamp(p, 0); g2_ids(p); g2_wload(p); stamp(p, 1); g2_hids(p); g2_main(p); fin(p, 3, 7); p("k4_end:\ns_endpgm")
    out += kernel_text('k4_kernel', [p])
    out += '.section .rodata,"a"\n' + ''.join(kd(f'k{k}_kernel') for k in range(1, 5))
    return out

if __name__ == '__main__':
    open(sys.argv[1], 'w').write(multi())
```

```python
import sys, os
from asmlib import *
from layout import *
import struct
def fhex(x): return '0x%08x' % struct.unpack('<I', struct.pack('<f', x))[0]

KNAME = 'adaLN_cond__ssm_conv_s4d__dense_activation_silu__prompt'
sX, sLA, sAI, sCR, sCI, sDT, sDS = 4, 6, 8, 10, 12, 14, 16
sW1, sW2, sC, sWM, sOUT, sDBG, sWS = 20, 22, 24, 26, 28, 30, 32
WS = 's[36:39]'
RA, RB, RC, RD, RE, RF = 40, 44, 48, 52, 56, 88
sWAVE, sXCD, sI = 60, 61, 62
def R(b): return f's[{b}:{b+3}]'
def srd(p, b, ptr, size):
    p(f"""s_mov_b32 s{b}, s{ptr}
    s_mov_b32 s{b+1}, s{ptr+1}
    s_mov_b32 s{b+2}, {size}
    s_mov_b32 s{b+3}, 0x20000""")
def vr(a, n): return f'v[{a}:{a+n-1}]' if n > 1 else f'v{a}'
def ar(a, n): return f'a[{a}:{a+n-1}]' if n > 1 else f'a{a}'

class Cfg:
    fused = False
    st = ''
    ld = ''
cfg = Cfg()

def preamble(p, lab):
    p(f"""s_load_dwordx16 s[4:19], s[0:1], 0
    s_load_dwordx8 s[20:27], s[0:1], 64
    s_load_dwordx4 s[28:31], s[0:1], 96
    s_load_dwordx2 s[32:33], s[0:1], 112
    s_cmp_ge_u32 s2, 256
    s_cbranch_scc1 {lab}_end
    v_and_b32 v1, 63, v0
    v_lshrrev_b32 v2, 6, v0
    s_and_b32 s{sXCD}, s2, 7
    s_lshr_b32 s{sI}, s2, 3
    v_readfirstlane_b32 s{sWAVE}, v2
    s_waitcnt lgkmcnt(0)""")
    srd(p, 36, sWS, hex(WS_END))

def rbf1(p, d, s):
    p(f"v_cvt_pk_bf16_f32 v{d}, v{s}, v{s}\nv_lshlrev_b32 v{d}, 16, v{d}")

def phase1_loads(p):
    srd(p, RA, sX, L*D*2); srd(p, RB, sWM, D*6*D*2); srd(p, RC, sC, D*2)
    p(f"""s_lshr_b32 s63, s2, 5
    s_bfe_u32 s64, s2, 0x30002
    s_and_b32 s65, s2, 3
    s_lshl_b32 s66, s63, 8
    s_lshl_b32 s67, s64, 2
    s_add_u32 s66, s66, s67
    s_add_u32 s66, s66, s65
    s_mul_i32 s66, s66, 1280
    v_and_b32 v3, 7, v0
    v_lshrrev_b32 v4, 3, v0
    v_mul_u32_u24 v5, 40960, v3
    v_lshl_add_u32 v5, v4, 3, v5""")
    for k in range(5):
        p(f"buffer_load_dwordx2 v[{10+4*k}:{11+4*k}], v5, {R(RA)}, s66 offen offset:{256*k}")
    p(f"""s_lshl_b32 s64, s64, 12
    s_lshl_b32 s67, s65, 10
    s_lshl_b32 s63, s63, 7
    s_add_u32 s63, s63, s64
    s_add_u32 s63, s63, s67
    s_add_u32 s63, s63, {hex(XP)}
    v_lshlrev_b32 v6, 15, v4
    v_lshl_add_u32 v6, v3, 4, v6""")
    p(f"""s_lshr_b32 s64, s2, 2
    s_min_u32 s67, s64, 59
    s_mul_i32 s68, s65, 160
    s_mul_i32 s69, s{sWAVE}, 40
    s_add_u32 s68, s68, s69
    s_mul_i32 s69, s68, 7680
    s_lshl_b32 s70, s67, 7
    s_add_u32 s69, s69, s70
    s_lshl_b32 s68, s68, 1
    v_lshrrev_b32 v7, 3, v1
    v_and_b32 v90, 7, v1
    v_mul_u32_u24 v91, 7680, v7
    v_lshl_add_u32 v91, v90, 4, v91
    v_lshlrev_b32 v7, 1, v7""")
    for i in range(5):
        p(f"buffer_load_ushort v{68+i}, v7, {R(RC)}, s68 offen offset:{16*i}")
    for i in range(5):
        p(f"buffer_load_dwordx4 v[{48+4*i}:{51+4*i}], v91, {R(RB)}, s69 offen")
        if i < 4: p("s_add_u32 s69, s69, 61440")
    p(f"""s_mul_i32 s68, s65, 15360
    s_lshl_b32 s70, s67, 8
    s_add_u32 s68, s68, s70
    s_add_u32 s68, s68, {hex(MODP)}
    s_cmp_lt_u32 s64, 60
    s_cselect_b32 s68, s68, 0x7f000000""")

def phase1_compute(p, ldsb=0):
    for k in range(5):
        for h in range(2):
            s = 10+4*k+h; d = 28+4*k+2*h
            p(f"v_lshlrev_b32 v{d}, 16, v{s}\nv_and_b32 v{d+1}, 0xffff0000, v{s}")
    p("v_pk_add_f32 v[82:83], v[28:29], v[30:31]\nv_pk_mul_f32 v[84:85], v[28:29], v[28:29]\nv_pk_fma_f32 v[84:85], v[30:31], v[30:31], v[84:85]")
    for k in range(2, 10):
        a = 28+2*k
        p(f"v_pk_add_f32 v[82:83], v[82:83], v[{a}:{a+1}]\nv_pk_fma_f32 v[84:85], v[{a}:{a+1}], v[{a}:{a+1}], v[84:85]")
    p(f"""v_add_f32 v82, v82, v83
    v_add_f32 v84, v84, v85
    v_add_f32_dpp v82, v82, v82 row_ror:8 row_mask:0xf bank_mask:0xf
    v_add_f32_dpp v84, v84, v84 row_ror:8 row_mask:0xf bank_mask:0xf
    v_permlane16_swap_b32 v82, v84
    v_add_f32 v82, v82, v84
    v_mov_b32 v84, v82
    v_permlane32_swap_b32 v82, v84
    v_add_f32 v82, v82, v84
    v_bfe_u32 v86, v1, 4, 1
    v_lshl_add_u32 v86, v3, 1, v86
    v_lshlrev_b32 v86, 4, v86
    s_lshl_b32 s70, s{sWAVE}, 2
    s_add_u32 s70, s70, {ldsb}
    v_add_u32 v86, s70, v86
    ds_write_b32 v86, v82""")
    for i in range(5):
        c = 68+i
        p(f"""v_lshlrev_b32 v{c}, 16, v{c}
        v_mul_f32 v87, {fhex(-LOG2E)}, v{c}
        v_exp_f32 v87, v87
        v_add_f32 v87, 1.0, v87
        v_rcp_f32 v87, v87
        v_mul_f32 v{c}, v{c}, v87""")
        rbf1(p, c, c)
    for i in range(5):
        p(f"v_mov_b32 v88, v{68+i}")
        for h in range(4):
            s = 48+4*i+h
            p(f"v_lshlrev_b32 v92, 16, v{s}\nv_and_b32 v93, 0xffff0000, v{s}")
            a = 74+2*h
            if i == 0: p(f"v_pk_mul_f32 v[{a}:{a+1}], v[92:93], v[88:89] op_sel_hi:[1,0]")
            else: p(f"v_pk_fma_f32 v[{a}:{a+1}], v[92:93], v[88:89], v[{a}:{a+1}] op_sel_hi:[1,0,1]")
    for k in range(4): p(f"v_permlane32_swap_b32 v{74+k}, v{78+k}")
    for k in range(4): p(f"v_add_f32 v{74+k}, v{74+k}, v{78+k}")
    for k in range(2): p(f"v_permlane16_swap_b32 v{74+k}, v{76+k}")
    for k in range(2): p(f"v_add_f32 v{74+k}, v{74+k}, v{76+k}")
    p(f"""v_add_f32_dpp v76, v74, v74 row_ror:8 row_mask:0xf bank_mask:0x3
    v_add_f32_dpp v76, v75, v75 row_ror:8 row_mask:0xf bank_mask:0xc
    v_lshrrev_b32 v87, 3, v1
    v_lshl_add_u32 v87, v90, 3, v87
    v_lshlrev_b32 v87, 4, v87
    v_add_u32 v87, s70, v87
    ds_write_b32 v87, v76 offset:256
    v_lshlrev_b32 v86, 5, v3
    v_lshlrev_b32 v87, 4, v1
    v_add_u32 v86, {ldsb}, v86
    v_add_u32 v87, {ldsb}, v87
    s_waitcnt lgkmcnt(0)
    s_barrier
    ds_read_b128 v[48:51], v86
    ds_read_b128 v[52:55], v86 offset:16
    ds_read_b128 v[56:59], v87 offset:256
    v_add_f32 v48, v48, v49
    v_add_f32 v50, v50, v51
    v_add_f32 v52, v52, v53
    v_add_f32 v54, v54, v55
    v_add_f32 v48, v48, v50
    v_add_f32 v52, v52, v54
    v_mul_f32 v48, {fhex(1/640)}, v48
    v_mul_f32 v52, {fhex(1/640)}, v52
    v_fma_f32 v52, -v48, v48, v52
    v_max_f32 v52, 0, v52""")
    rbf1(p, 52, 52)
    p(f"v_add_f32 v52, {fhex(1e-5)}, v52")
    rbf1(p, 52, 52)
    p("v_sqrt_f32 v52, v52")
    rbf1(p, 48, 48)
    rbf1(p, 52, 52)
    p("""v_rcp_f32 v52, v52
    v_add_f32 v56, v56, v57
    v_add_f32 v58, v58, v59
    v_mul_f32 v54, -v48, v52
    v_add_f32 v56, v56, v58
    v_lshlrev_b32 v87, 2, v1""")
    for k in range(5):
        for h in range(2):
            a = 28+4*k+2*h
            p(f"v_pk_fma_f32 v[{a}:{a+1}], v[{a}:{a+1}], v[52:53], v[54:55] op_sel_hi:[1,0,0]")
            p(f"v_cvt_pk_bf16_f32 v{8+4*k+h}, v{a}, v{a+1}")
        p(f"buffer_store_dwordx4 v[{8+4*k}:{11+4*k}], v6, {WS}, s63 offen {cfg.st}")
        if k < 4: p("s_add_u32 s63, s63, 0x100000")
    p(f"""s_cmp_eq_u32 s{sWAVE}, 0
    s_cselect_b32 s68, s68, 0x7f000000
    buffer_store_dword v56, v87, {WS}, s68 offen {cfg.st}""")

STG = 33792
HT, XT, FT, EXB = 0, 4608, 9216, 143872
P1L = 160256
def kgen_loads(p):
    srd(p, RA, sLA, D*NM*2); srd(p, RB, sAI, D*NM*2); srd(p, RC, sCR, D*NM*2); srd(p, RD, sCI, D*NM*2)
    srd(p, RE, sDT, D*2); srd(p, RF, sDS, D*2)
    p(f"""s_lshl_b32 s72, s71, 2
    s_add_u32 s72, s72, s{sWAVE}
    s_lshl_b32 s73, s72, 8
    s_lshl_b32 s72, s72, 1
    v_lshlrev_b32 v100, 2, v1
    v_mov_b32 v101, 0
    buffer_load_ushort v106, v101, {R(RE)}, s72 offen
    buffer_load_dword v102, v100, {R(RA)}, s73 offen
    buffer_load_dword v103, v100, {R(RB)}, s73 offen
    buffer_load_dword v104, v100, {R(RC)}, s73 offen
    buffer_load_dword v105, v100, {R(RD)}, s73 offen
    buffer_load_ushort v107, v101, {R(RF)}, s72 offen""")

def cmul(d, x, w, t):
    return [f"v_pk_mul_f32 v[{t}:{t+1}], v[{x}:{x+1}], v[{w}:{w+1}] op_sel_hi:[1,0]",
            f"v_pk_fma_f32 v[{d}:{d+1}], v[{x}:{x+1}], v[{w}:{w+1}], v[{t}:{t+1}] op_sel:[1,1,0] op_sel_hi:[0,1,1] neg_lo:[1,0,0]"]
sDK = 74
def kgen_compute(p):
    p(f"""v_lshlrev_b32 v106, 16, v106
    v_mul_f32 v106, {fhex(LOG2E)}, v106
    v_exp_f32 v106, v106
    v_lshlrev_b32 v107, 16, v107""")
    rbf1(p, 106, 106)
    p(f"v_readfirstlane_b32 s{sDK}, v107")
    B = [110, 140]
    W1_, W8_, W256_, E_, T_, G_, FC_, T2_ = 0, 2, 4, 6, 8, 10, 20, 22
    A2, B2, TA, TB = 24, 25, 26, 27
    def both(f):
        a, b = f(0), f(1)
        for x, y in zip(a, b): p(x); p(y)
    def unp(d, s, mu): return f"v_lshlrev_b32 v{d}, 16, v{s}" if mu == 0 else f"v_and_b32 v{d}, 0xffff0000, v{s}"
    both(lambda m: [unp(B[m]+A2, 102, m), f"v_mul_f32 v{B[m]+A2}, {fhex(LOG2E)}, v{B[m]+A2}", f"v_exp_f32 v{B[m]+A2}, v{B[m]+A2}",
                    unp(B[m]+B2, 103, m), f"v_cvt_pk_bf16_f32 v{B[m]+A2}, v{B[m]+A2}, v{B[m]+A2}", f"v_mul_f32 v{B[m]+B2}, v{B[m]+B2}, v106",
                    f"v_lshlrev_b32 v{B[m]+A2}, 16, v{B[m]+A2}", f"v_mul_f32 v{B[m]+B2}, 0.15915494, v{B[m]+B2}",
                    f"v_mul_f32 v{B[m]+A2}, v{B[m]+A2}, v106", unp(B[m]+G_, 104, m), f"v_mul_f32 v{B[m]+A2}, {fhex(-LOG2E)}, v{B[m]+A2}",
                    unp(B[m]+G_+1, 105, m)])
    for W, pw in ((W8_, 8.0), (W1_, 1.0), (W256_, 256.0)):
        both(lambda m: [f"v_mul_f32 v{B[m]+TB}, {fhex(pw)}, v{B[m]+B2}", f"v_mul_f32 v{B[m]+TA}, {fhex(pw)}, v{B[m]+A2}",
                        f"v_rndne_f32 v{B[m]+T_}, v{B[m]+TB}", f"v_exp_f32 v{B[m]+TA}, v{B[m]+TA}",
                        f"v_sub_f32 v{B[m]+TB}, v{B[m]+TB}, v{B[m]+T_}",
                        f"v_cos_f32 v{B[m]+W}, v{B[m]+TB}", f"v_sin_f32 v{B[m]+W+1}, v{B[m]+TB}",
                        f"v_mul_f32 v{B[m]+W}, v{B[m]+W}, v{B[m]+TA}", f"v_mul_f32 v{B[m]+W+1}, v{B[m]+W+1}, v{B[m]+TA}"])
    p(f"""s_mul_i32 s75, s{sWAVE}, {STG}
    v_lshlrev_b32 v108, 3, v1
    v_add_u32 v108, s75, v108""")
    rot = [0]
    def wr(rows, off, neg):
        c = 170 + 6*int(neg) + 2*(rot[0] % 3); rot[0] += 1
        o = [f"v_cvt_pk_bf16_f32 v{c+m}, v{B[m]+off}, {'-' if neg else ''}v{B[m]+off+1}" for m in range(2)]
        o += [f"ds_write_b64 v108, v[{c}:{c+1}] offset:{528*r}" for r in rows]
        return o
    POS = [[0,1,2,3,4,5,6,7,512,516,520,1024,1032,1280,1288],
           [256,256,258,260,260,260,262,264,768,772,776,1536,1544,1792,1800]]
    def frows(pos): return [32 + 8*(u >> 2) + 4*hd + (u & 3) for hd in range(2) for u, q in enumerate(POS[hd]) if q == pos]
    es = ["v_mov_b32 v182, 0x3f80", "v_mov_b32 v183, 0x3f80", "ds_write_b64 v108, v[182:183]"]
    es_steps = []
    es_steps.append(wr([1], W8_, False))
    src = W8_
    for j in range(2, 32):
        a = cmul(B[0]+E_, B[0]+src, B[0]+W8_, B[0]+T_); b = cmul(B[1]+E_, B[1]+src, B[1]+W8_, B[1]+T_)
        es_steps.append([a[0], b[0], a[1], b[1]] + wr([j], E_, False)); src = E_
    fs_steps = [wr(frows(0), G_, True)]
    src = G_
    for b_ in range(1, 9):
        dst = G_ + b_ if b_ % 2 == 0 else FC_
        a = cmul(B[0]+dst, B[0]+src, B[0]+W1_, B[0]+T2_); b = cmul(B[1]+dst, B[1]+src, B[1]+W1_, B[1]+T2_)
        fs_steps.append([a[0], b[0], a[1], b[1]] + (wr(frows(b_), dst, True) if b_ < 8 else [])); src = dst
    for base, es_ in ((256, (0,2,4,6,8)), (512, (0,4,8)), (768, (0,4,8)), (1024, (0,8)), (1280, (0,8)), (1536, (0,8)), (1792, (0,8))):
        for e in es_:
            g = G_ + e
            a = cmul(B[0]+g, B[0]+g, B[0]+W256_, B[0]+T2_); b = cmul(B[1]+g, B[1]+g, B[1]+W256_, B[1]+T2_)
            fs_steps.append([a[0], b[0], a[1], b[1]] + wr(frows(base+e), g, True))
    for x in es: p(x)
    n = max(len(es_steps), len(fs_steps))
    for k in range(n):
        a = es_steps[k] if k < len(es_steps) else []
        b = fs_steps[k] if k < len(fs_steps) else []
        m = max(len(a), len(b))
        for z in range(m):
            if z < len(a): p(a[z])
            if z < len(b): p(b[z])
    p(f"""v_and_b32 v109, 31, v1
    v_lshrrev_b32 v110, 5, v1
    v_mul_u32_u24 v111, 528, v109
    v_lshl_add_u32 v111, v110, 4, v111
    v_add_u32 v111, s75, v111
    s_add_u32 s76, s75, {FT}
    v_lshlrev_b32 v112, 4, v109
    v_add_u32 v112, s76, v112
    v_lshl_add_u32 v113, v110, 10, v112
    v_lshl_add_u32 v112, v110, 9, v112
    v_add_f32 v106, v106, v106
    v_and_b32 v114, 15, v1
    v_lshl_add_u32 v114, v114, 2, s76
    v_mov_b32 v115, 0""")
    for ks in range(16):
        p(f"ds_read_b128 {ar(8*ks, 4)}, v111 offset:{32*528+32*ks}\nds_read_b128 {ar(8*ks+4, 4)}, v111 offset:{32*ks}")
        if ks >= 3:
            k = ks-3
            p(f"v_mfma_f32_32x32x16_bf16 v[116:131], {ar(8*k,4)}, {ar(8*k+4,4)}, {'0' if k == 0 else 'v[116:131]'}")
    for k in range(13, 16):
        p(f"v_mfma_f32_32x32x16_bf16 v[116:131], {ar(8*k,4)}, {ar(8*k+4,4)}, v[116:131]")
    p("s_mov_b32 s78, 0xaaaaaaaa\ns_mov_b32 s79, 0xaaaaaaaa")
    for u in range(0, 16, 2):
        p(f"v_pk_mul_f32 v[{116+u}:{117+u}], v[{116+u}:{117+u}], v[106:107] op_sel_hi:[1,0]")
    K = lambda u: f"v{116+u}"
    for z in range(4): p(f"v_cvt_pk_bf16_f32 v{132+z}, {K(2*z)}, {K(2*z+1)}")
    p("ds_write_b32 v114, v115\nds_write_b128 v112, v[132:135] offset:64")
    for z, (a, b) in enumerate(((8,8),(8,9),(9,9),(10,10))): p(f"v_cvt_pk_bf16_f32 v{136+z}, {K(a)}, {K(b)}")
    p("ds_write_b128 v112, v[136:139] offset:1088")
    for sl, (k0, o) in enumerate(((11, 2048+64), (13, 2560+64))):
        q = 140+4*sl
        p(f"""v_cndmask_b32 v148, {K(k0)}, {K(k0+1)}, s[78:79]
        v_cvt_pk_bf16_f32 v{q}, {K(k0)}, {K(k0)}
        v_cvt_pk_bf16_f32 v{q+1}, {K(k0)}, {K(k0)}
        v_cvt_pk_bf16_f32 v{q+2}, v148, {K(k0+1)}
        v_cvt_pk_bf16_f32 v{q+3}, {K(k0+1)}, {K(k0+1)}
        ds_write_b128 v113, v[{q}:{q+3}] offset:{o}""")

sA01, sGA = 80, 84
def conv_loads(p):
    p(f"""v_lshlrev_b32 v3, 4, v0
    s_lshl_b32 s77, s71, 15
    s_add_u32 s77, s77, {hex(XP)}
    v_lshrrev_b32 v4, 4, v1
    v_bfe_u32 v5, v1, 2, 2
    v_and_b32 v6, 3, v1
    v_mul_u32_u24 v4, 2560, v4
    v_mul_u32_u24 v5, 15360, v5
    v_lshl_add_u32 v4, v6, 2, v4
    v_add_u32 v4, v4, v5
    s_lshl_b32 s85, s71, 4
    s_add_u32 s85, s85, {hex(MODP)}
    buffer_load_dword v7, v4, {WS}, s85 offen {cfg.ld}""")
    for j in range(8):
        p(f"buffer_load_dwordx4 v[{8+4*j}:{11+4*j}], v3, {WS}, s77 offen {cfg.ld}")
        if j < 7: p("s_add_u32 s77, s77, 4096")

def conv_prep(p):
    p(f"""v_lshrrev_b32 v4, 4, v1
    v_cmp_eq_u32 vcc, 1, v4
    v_cndmask_b32 v4, 0, 1.0, vcc
    v_add_f32_dpp v7, v7, v7 row_ror:4 row_mask:0xf bank_mask:0xf
    v_add_f32_dpp v7, v7, v7 row_ror:8 row_mask:0xf bank_mask:0xf""")
    rbf1(p, 7, 7)
    p("v_add_f32 v7, v7, v4")
    rbf1(p, 7, 7)
    p(f"s_add_u32 s86, s{sWAVE}, 32")
    for ch in range(4): p(f"v_readlane_b32 s{sA01+ch}, v7, {16+ch}")
    for ch in range(4): p(f"v_readlane_b32 s{64+ch}, v7, {ch}")
    p(f"v_readlane_b32 s{sGA}, v7, s86")
    for ch in range(4): p(f"v_mov_b32 v{40+ch}, s{64+ch}")
    p(f"""s_mul_i32 s86, s{sWAVE}, 1152
    v_lshlrev_b32 v5, 4, v1
    v_add_u32 v5, s86, v5
    v_add_u32 v6, {2*STG}, v5
    v_mov_b32 v44, 0
    v_mov_b32 v45, 0
    v_mov_b32 v46, 0
    v_mov_b32 v47, 0
    s_mov_b64 exec, 0x7f""")
    for ch in range(4): p(f"ds_write_b128 v{5+(ch>>1)}, v[44:47] offset:{HT+STG*(ch&1)}")
    p("s_mov_b64 exec, -1\ns_mov_b32 s86, 0x05040100\ns_mov_b32 s87, 0x07060302")
    Hh = 48
    for j in range(8):
        for h in range(2):
            s = 8+4*j+h; d = Hh+4*j+2*h
            p(f"v_lshlrev_b32 v{d}, 16, v{s}\nv_and_b32 v{d+1}, 0xffff0000, v{s}")
            p(f"v_pk_fma_f32 v[{d}:{d+1}], v[{d}:{d+1}], s[{sA01+2*h}:{sA01+2*h+1}], v[{40+2*h}:{41+2*h}]")
    for ch in range(4):
        q = 80+4*ch
        for z in range(4): p(f"v_cvt_pk_bf16_f32 v{q+z}, v{Hh+8*z+ch}, v{Hh+8*z+4+ch}")
        p(f"ds_write_b128 v{5+(ch>>1)}, v[{q}:{q+3}] offset:{HT+STG*(ch&1)+112}")
    for ch in range(4):
        q = 96+4*ch
        for z in range(4):
            p(f"v_perm_b32 v{q+z}, v{8+8*z+4+2+(ch>>1)}, v{8+8*z+2+(ch>>1)}, s{86+(ch&1)}")
        p(f"ds_write_b128 v{5+(ch>>1)}, v[{q}:{q+3}] offset:{XT+STG*(ch&1)+112}")

vAA, vBA, vHA, vEA, vI1, vI2, vZ = 8, 9, 10, 11, 12, 13, 14
def conv_addr(p):
    p(f"""v_lshrrev_b32 v20, 5, v1
    v_bfe_u32 v21, v1, 4, 1
    v_bfe_u32 v22, v1, 2, 2
    v_and_b32 v23, 1, v1
    v_bfe_u32 v24, v1, 1, 1
    v_and_b32 v25, 7, v1
    v_bfe_u32 v26, v1, 3, 1
    s_mul_i32 s76, s{sWAVE}, {STG}
    s_add_u32 s76, s76, {FT+96}
    v_lshlrev_b32 v27, 5, v23
    v_lshl_add_u32 v27, v21, 4, v27
    v_lshl_add_u32 v27, v24, 3, v27
    v_lshlrev_b32 v28, 6, v20
    v_lshl_add_u32 v28, v22, 3, v28
    v_sub_u32 v27, v27, v28
    v_add_u32 v{vAA}, s76, v27
    s_mul_i32 s76, s{sWAVE}, {STG}
    v_lshl_add_u32 v27, v26, 1, v21
    v_mul_u32_u24 v27, 1152, v27
    v_add_u32 v28, v25, v20
    v_lshl_add_u32 v27, v28, 4, v27
    v_add_u32 v{vBA}, s76, v27
    v_lshrrev_b32 v27, 3, v1
    v_lshlrev_b32 v27, 1, v27
    v_lshl_add_u32 v27, v25, 4, v27
    s_add_u32 s76, s76, 112
    v_add_u32 v{vHA}, s76, v27
    v_and_b32 v27, 15, v1
    v_lshlrev_b32 v27, 4, v27
    v_lshl_add_u32 v27, v20, 8, v27
    v_lshl_add_u32 v27, v21, 3, v27
    s_lshl_b32 s76, s{sWAVE}, 1
    s_add_u32 s76, s76, {EXB}
    v_add_u32 v{vEA}, s76, v27
    v_add_u32 v27, 7, v1
    v_and_b32 v27, 7, v27
    v_lshl_add_u32 v27, v26, 3, v27
    v_add_u32 v27, 48, v27
    v_subrev_u32 v28, 16, v1
    v_cmp_gt_u32 vcc, 16, v1
    v_cndmask_b32 v27, v28, v27, vcc
    v_lshlrev_b32 v{vI1}, 2, v27
    v_or_b32 v{vI2}, 32, v{vI1}
    v_mov_b32 v{vZ}, 0
    s_mov_b32 s78, 0
    s_mov_b32 s79, 0x80800000""")

def conv_main(p):
    Dr = lambda X: 128+16*X
    Aa = lambda s: 128+4*s
    Ba = lambda w: 4*(w+3)
    def loads(X):
        o = []
        for z in range(4):
            s = 4*X+z; w = 4*X-z
            o += mk(f"ds_read_b128 {ar(Ba(w),4)}, v{vBA} offset:{32*(w+3)}")
            o += mk(f"ds_read_b64_tr_b16 {ar(Aa(s),2)}, v{vAA} offset:{128*s+32}\nds_read_b64_tr_b16 {ar(Aa(s)+2,2)}, v{vAA} offset:{128*s}")
        return o
    def post(X):
        r = Dr(X); T = 16+24*(X & 1)
        pv = (lambda k: f"v{Dr(X-1)+k}") if X else (lambda k: f"v{vZ}")
        o = []
        for c in range(4):
            o += mk(f"ds_read_u16_d16_hi v{T+c}, v{vHA} offset:{HT+1152*c+128*X}\nds_read_u16_d16_hi v{T+4+c}, v{vHA} offset:{XT+1152*c+128*X}")
        for a in (7,6,5,4,3,2,1,0): o += mk(f"v_permlane16_swap_b32 v{r+a}, v{r+a+8}")
        o += mk(f"v_cndmask_b32 v{T+8}, v{r+15}, {pv(15)}, s[78:79]\nds_bpermute_b32 v{T+8}, v{vI1}, v{T+8}")
        for a in (7,6): o += mk(f"v_add_f32 v{r+a}, v{r+a}, v{r+a+7}")
        o += mk(f"""v_cndmask_b32 v{T+9}, v{r+6}, {pv(6)}, s[78:79]
        v_cndmask_b32 v{T+10}, v{r+7}, {pv(7)}, s[78:79]
        ds_bpermute_b32 v{T+9}, v{vI2}, v{T+9}
        ds_bpermute_b32 v{T+10}, v{vI2}, v{T+10}""")
        for a in (5,4,3,2,1): o += mk(f"v_add_f32 v{r+a}, v{r+a}, v{r+a+7}")
        Y = T+12
        m = "row_ror:8 row_mask:0xf bank_mask:"
        o += mk(f"""v_add_f32 v{r}, v{r}, v{T+8}
        v_add_f32_dpp v{Y+3}, v{r+1}, v{r+3} {m}0xf
        v_add_f32 v{Y+1}, v{r+1}, v{T+10}
        v_add_f32 v{Y}, v{r}, v{T+9}
        v_add_f32_dpp v{Y+2}, v{r}, v{r+2} {m}0xf
        v_add_f32_dpp v{Y+3}, v{r+7}, v{r+5} {m}0xc
        v_add_f32_dpp v{Y+1}, v{r+5}, v{r+3} {m}0xc
        v_add_f32_dpp v{Y}, v{r+4}, v{r+2} {m}0xc
        v_add_f32_dpp v{Y+2}, v{r+6}, v{r+4} {m}0xc""")
        for c in (3,1,0,2): o += mk(f"v_fmac_f32 v{Y+c}, s{sDK}, v{T+c}")
        for c in (3,1,0,2): o += mk(f"v_fmac_f32 v{T+4+c}, s{sGA}, v{Y+c}")
        o += mk(f"""v_cvt_pk_bf16_f32 v{T+16}, v{T+4}, v{T+5}
        v_cvt_pk_bf16_f32 v{T+17}, v{T+6}, v{T+7}
        ds_write_b16 v{vEA}, v{T+16} offset:{2048*X}
        ds_write_b16_d16_hi v{vEA}, v{T+16} offset:{2048*X+512}
        ds_write_b16 v{vEA}, v{T+17} offset:{2048*X+1024}
        ds_write_b16_d16_hi v{vEA}, v{T+17} offset:{2048*X+1536}""")
        return o
    p.extend(loads(0))
    main = []; fill = []
    for X in range(8):
        if X < 7: fill.append((len(main), loads(X+1)))
        for s in range(4*X+4):
            c = '0' if s == 0 else vr(Dr(X), 16)
            main.append(mk(f"v_mfma_f32_32x32x16_bf16 {vr(Dr(X),16)}, {ar(Aa(s),4)}, {ar(Ba(4*X-s),4)}, {c}"))
        fill.append((len(main)+1, post(X)))
    out = []; q = []; credit = 0
    pend = sorted(fill, key=lambda x: x[0]); g0 = 0
    tile_start = {}
    k = 0
    for X in range(8):
        tile_start[k] = X; k += 4*X+4
    lq = []
    for g, grp in enumerate(main):
        if g in tile_start:
            out += lq; lq = []
        out += grp
        for (st, lst) in pend:
            if st == g:
                if lst[0].op == 'ds_read_b128': lq = list(lst)
                else: q += lst
        credit += 5.0
        while lq and credit >= 1: out.append(lq.pop(0)); credit -= 1
        while q and credit >= cost(q[0]): credit -= cost(q[0]); out.append(q.pop(0))
        if not q and not lq: credit = 0
    for (st, lst) in pend:
        if st >= len(main): q += lst
    out += q
    p.extend(out)

def conv_store(p):
    p(f"""v_lshlrev_b32 v5, 4, v0
    v_add_u32 v6, {EXB}, v5
    s_lshl_b32 s77, s71, 14
    s_add_u32 s77, s77, {hex(X2)}
    s_waitcnt lgkmcnt(0)
    s_barrier""")
    for k in range(4): p(f"ds_read_b128 v[{64+4*k}:{67+4*k}], v6 offset:{4096*k}")
    for k in range(4):
        p(f"buffer_store_dwordx4 v[{64+4*k}:{67+4*k}], v5, {WS}, s77 offen {cfg.st}", ('tok', 'x2st'))
        if k < 3: p("s_add_u32 s77, s77, 4096")

def w1h_loads(p):
    srd(p, RA, sW1, D*F*2)
    p(f"""v_and_b32 v3, 3, v0
    v_lshrrev_b32 v4, 2, v0
    s_lshl_b32 s72, s71, 2
    v_add_u32 v5, s72, v3
    v_mul_u32_u24 v6, 4682, v5
    v_lshrrev_b32 v6, 16, v6
    v_mul_u32_u24 v7, 14, v6
    v_sub_u32 v7, v5, v7
    v_cmp_eq_u32 s[72:73], 13, v7
    v_lshlrev_b32 v5, 4, v5
    v_lshlrev_b32 v6, 3, v6
    v_sub_u32 v5, v5, v6
    v_mul_u32_u24 v6, 34560, v4
    v_add_u32 v5, v5, v6
    s_mov_b32 s74, 0""")
    for i in range(10):
        p(f"buffer_load_dwordx4 v[{8+4*i}:{11+4*i}], v5, {R(RA)}, s74 offen")
        if i < 9: p("s_add_u32 s74, s74, 3456")

def w1h_compute(p):
    AS = 0; RED = 5120; WT = 8192
    p(f"""v_lshlrev_b32 v48, 4, v0
    v_min_u32 v48, {159*16}, v48
    s_mov_b32 s74, {hex(MODP+3*2560)}""")
    for k in range(4):
        p(f"buffer_load_dwordx4 v[{52+8*k}:{55+8*k}], v48, {WS}, s74 offen {cfg.ld}")
        p(f"buffer_load_dwordx4 v[{56+8*k}:{59+8*k}], v48, {WS}, s74 offen offset:2560 {cfg.ld}")
        if k < 3: p("s_add_u32 s74, s74, 15360")
    for z in range(0, 8, 2):
        p(f"v_pk_add_f32 v[{52+z}:{53+z}], v[{52+z}:{53+z}], v[{60+z}:{61+z}]\nv_pk_add_f32 v[{68+z}:{69+z}], v[{68+z}:{69+z}], v[{76+z}:{77+z}]")
        p(f"v_pk_add_f32 v[{52+z}:{53+z}], v[{52+z}:{53+z}], v[{68+z}:{69+z}]")
    for z in range(4):
        p(f"v_cvt_pk_bf16_f32 v60, v{52+z}, v{56+z}\nv_lshlrev_b32 v{65+2*z}, 16, v60\nv_and_b32 v61, 0xffff0000, v60\nv_add_f32 v61, 1.0, v61")
        rbf1(p, 64+2*z, 61)
    p(f"""v_lshlrev_b32 v48, 1, v48
    ds_write_b128 v48, v[64:67] offset:{AS}
    ds_write_b128 v48, v[68:71] offset:{AS+16}
    v_mul_u32_u24 v49, 80, v4
    s_waitcnt lgkmcnt(0)
    s_barrier""")
    for z in range(5): p(f"ds_read_b128 v[{52+4*z}:{55+4*z}], v49 offset:{AS+16*z}")
    Wp, U, V = 80, 160, 168
    for i in range(10):
        for h in range(4):
            s = 8+4*i+h; d = Wp+8*i+2*h; a = 52+2*i
            p(f"v_lshlrev_b32 v{d}, 16, v{s}\nv_and_b32 v{d+1}, 0xffff0000, v{s}")
            if i == 0: p(f"v_pk_mul_f32 v[{V+2*h}:{V+2*h+1}], v[{d}:{d+1}], v[{a}:{a+1}] op_sel:[0,1] op_sel_hi:[1,1]")
            else: p(f"v_pk_fma_f32 v[{V+2*h}:{V+2*h+1}], v[{d}:{d+1}], v[{a}:{a+1}], v[{V+2*h}:{V+2*h+1}] op_sel:[0,1,0] op_sel_hi:[1,1,1]")
            p(f"v_pk_mul_f32 v[{d}:{d+1}], v[{d}:{d+1}], v[{a}:{a+1}] op_sel_hi:[1,0]")
            if i == 1: p(f"v_pk_add_f32 v[{U+2*h}:{U+2*h+1}], v[{d}:{d+1}], v[{d-8}:{d-7}]")
            elif i > 1: p(f"v_pk_add_f32 v[{U+2*h}:{U+2*h+1}], v[{U+2*h}:{U+2*h+1}], v[{d}:{d+1}]")
    for k in range(8): p(f"v_permlane32_swap_b32 v{U+k}, v{V+k}")
    for k in range(8): p(f"v_add_f32 v{U+k}, v{U+k}, v{V+k}")
    for k in range(4): p(f"v_permlane16_swap_b32 v{U+k}, v{U+4+k}")
    for k in range(4): p(f"v_add_f32 v{U+k}, v{U+k}, v{U+4+k}")
    m = "row_ror:8 row_mask:0xf bank_mask:"
    p(f"""v_add_f32_dpp v{V}, v{U}, v{U} {m}0x3
    v_add_f32_dpp v{V+1}, v{U+1}, v{U+1} {m}0x3
    v_add_f32_dpp v{V}, v{U+2}, v{U+2} {m}0xc
    v_add_f32_dpp v{V+1}, v{U+3}, v{U+3} {m}0xc
    v_lshrrev_b32 v50, 5, v1
    v_lshlrev_b32 v50, 2, v50
    v_add_u32 v50, v50, v3
    v_lshlrev_b32 v50, 2, v50
    v_bfe_u32 v51, v1, 3, 2
    v_add_u32 v50, v50, v51
    v_lshlrev_b32 v50, 6, v50
    v_bfe_u32 v51, v1, 2, 1
    v_lshl_add_u32 v50, v51, 2, v50
    s_lshl_b32 s74, s{sWAVE}, 3
    v_add_u32 v50, s74, v50
    ds_write_b32 v50, v{V} offset:{RED}
    ds_write_b32 v50, v{V+1} offset:{RED+32}
    v_lshlrev_b32 v50, 5, v1
    s_waitcnt lgkmcnt(0)
    s_barrier
    ds_read_b128 v[52:55], v50 offset:{RED}
    ds_read_b128 v[56:59], v50 offset:{RED+16}
    v_pk_add_f32 v[52:53], v[52:53], v[54:55]
    v_pk_add_f32 v[56:57], v[56:57], v[58:59]
    v_pk_add_f32 v[52:53], v[52:53], v[56:57]
    v_add_f32 v52, v52, v53
    v_mul_f32 v53, {fhex(-LOG2E)}, v52
    v_mul_f32 v52, {fhex(-1/640)}, v52
    v_lshlrev_b32 v50, 5, v3""")
    for e in range(8):
        p(f"v_add_u32 v51, {4*e}, v50\nds_bpermute_b32 v{U+e}, v51, v52")
    p(f"""v_lshlrev_b32 v51, 2, v1
    s_lshl_b32 s74, s71, 7
    s_add_u32 s74, s74, {hex(VV-128)}
    s_cmp_eq_u32 s{sWAVE}, 0
    s_cselect_b32 s74, s74, 0x7f000000
    s_mov_b32 exec_lo, 0
    buffer_store_dword v53, v51, {WS}, s74 offen {cfg.st}
    s_mov_b32 exec_lo, -1
    v_mul_u32_u24 v49, 640, v4
    v_lshl_add_u32 v49, v3, 4, v49
    v_mov_b32 v60, 0x3f80
    v_mov_b32 v61, 0""")
    for i in range(10):
        q = 64+4*(i & 3)
        for h in range(4):
            d = Wp+8*i+2*h
            p(f"v_pk_add_f32 v[{d}:{d+1}], v[{d}:{d+1}], v[{U+2*h}:{U+2*h+1}]\nv_cvt_pk_bf16_f32 v{q+h}, v{d}, v{d+1}")
        p(f"v_cndmask_b32 v{q+2}, v{q+2}, v60, s[72:73]\nv_cndmask_b32 v{q+3}, v{q+3}, v61, s[72:73]")
        p(f"ds_write_b128 v49, v[{q}:{q+3}] offset:{WT+64*i}")
    p(f"""v_lshrrev_b32 v50, 4, v1
    v_bfe_u32 v51, v1, 2, 2
    v_lshl_add_u32 v50, v50, 3, v51
    v_lshlrev_b32 v50, 6, v50
    v_lshl_add_u32 v50, v3, 3, v50
    s_mul_i32 s74, s{sWAVE}, {5*2048}
    v_add_u32 v50, s74, v50
    v_lshlrev_b32 v51, 4, v1""")
    for tt in range(2):
        p(f"""s_lshl_b32 s75, s71, 1
        s_add_u32 s75, s75, {tt}
        s_mul_i32 s76, s75, 9363
        s_lshr_b32 s76, s76, 16
        s_mul_i32 s77, s76, 133
        s_add_u32 s75, s75, s77
        s_mul_i32 s76, s{sWAVE}, 35
        s_add_u32 s75, s75, s76
        s_lshl_b32 s75, s75, 10
        s_add_u32 s{78+tt}, s75, {hex(W1F)}""")
    p("s_waitcnt lgkmcnt(0)\ns_barrier")
    for k in range(5):
        for tt in range(2):
            q = 80+8*k+4*tt
            p(f"ds_read_b64_tr_b16 v[{q}:{q+1}], v50 offset:{WT+2048*k+32*tt}\nds_read_b64_tr_b16 v[{q+2}:{q+3}], v50 offset:{WT+2048*k+32*tt+256}")
    for k in range(5):
        for tt in range(2):
            q = 80+8*k+4*tt
            p(f"buffer_store_dwordx4 v[{q}:{q+3}], v51, {WS}, s{78+tt} offen {cfg.st}")
            if k < 4: p(f"s_add_u32 s{78+tt}, s{78+tt}, 7168")

def w2h(p):
    srd(p, RA, sW2, F*D*2)
    p(f"""s_lshr_b32 s72, s{sWAVE}, 1
    s_lshl_b32 s73, s71, 1
    s_add_u32 s72, s72, s73
    s_and_b32 s73, s{sWAVE}, 1
    s_mul_i32 s74, s72, 9363
    s_lshr_b32 s74, s74, 16
    s_mul_i32 s75, s74, 7
    s_sub_u32 s75, s72, s75
    s_lshl_b32 s74, s74, 1
    s_cmp_ge_u32 s75, 3
    s_cselect_b32 s76, 1, 0
    s_cselect_b32 s77, 3, 0
    s_sub_u32 s77, s75, s77
    s_lshl_b32 s77, s77, 1
    s_add_u32 s77, s77, s73
    s_cmp_eq_u32 s75, 6
    s_cselect_b32 s76, s73, s76
    s_cselect_b32 s77, 6, s77
    s_add_u32 s74, s74, s76
    s_mul_i32 s74, s74, 108
    s_lshl_b32 s76, s77, 4
    s_add_u32 s74, s74, s76
    s_mul_i32 s74, s74, 1280
    s_mul_i32 s76, s{sWAVE}, 20480
    s_mov_b32 m0, s76
    v_lshlrev_b32 v3, 4, v1""")
    for q in range(4):
        if q == 3: p("s_cmp_eq_u32 s77, 6\ns_cselect_b32 s74, 0x7f000000, s74")
        for i in range(5):
            p(f"buffer_load_dwordx4 v3, {R(RA)}, s74 offen lds\ns_add_u32 m0, m0, 1024\ns_add_u32 s74, s74, 1024")
    p(f"""v_lshrrev_b32 v4, 4, v1
    v_bfe_u32 v5, v1, 2, 2
    v_and_b32 v6, 3, v1
    v_mul_u32_u24 v4, 5120, v4
    v_mul_u32_u24 v5, 1280, v5
    v_add_u32 v4, v4, v5
    s_lshr_b32 s75, s{sWAVE}, 1
    s_mul_i32 s75, s75, 40960
    s_mul_i32 s76, s73, 640
    s_add_u32 s75, s75, s76
    v_add_u32 v4, s75, v4
    v_lshl_add_u32 v5, v6, 3, v4
    v_lshl_add_u32 v4, v6, 4, v4
    s_mul_i32 s75, s73, {4*286720}
    s_mul_i32 s76, s72, 5120
    s_add_u32 s75, s75, s76
    s_add_u32 s75, s75, {hex(W2F)}
    s_waitcnt vmcnt(0)
    s_barrier""")
    for cb in range(4):
        for nt in range(5):
            q = 8+20*cb+4*nt
            va = 4 if nt < 4 else 5
            off = 160*cb + (64*(nt >> 1) + 8*(nt & 1) if nt < 4 else 128)
            p(f"ds_read_b64_tr_b16 v[{q}:{q+1}], v{va} offset:{off}\nds_read_b64_tr_b16 v[{q+2}:{q+3}], v{va} offset:{off+20480}")
    for cb in range(4):
        for nt in range(5):
            q = 8+20*cb+4*nt
            if nt < 4: p(f"buffer_store_dwordx4 v[{q}:{q+3}], v3, {WS}, s75 offen offset:{1024*nt} {cfg.st}")
            else: p(f"s_add_u32 s76, s75, 4096\nbuffer_store_dwordx4 v[{q}:{q+3}], v3, {WS}, s76 offen {cfg.st}")
        if cb < 3: p("s_add_u32 s75, s75, 286720")

def gbh(p):
    p(f"""v_lshlrev_b32 v48, 4, v0
    v_min_u32 v48, {159*16}, v48
    s_mov_b32 s74, {hex(MODP+5*2560)}""")
    for k in range(4):
        p(f"buffer_load_dwordx4 v[{52+4*k}:{55+4*k}], v48, {WS}, s74 offen {cfg.ld}")
        if k < 3: p("s_add_u32 s74, s74, 15360")
    for z in range(4):
        p(f"v_add_f32 v{52+z}, v{52+z}, v{56+z}\nv_add_f32 v{60+z}, v{60+z}, v{64+z}\nv_add_f32 v{52+z}, v{52+z}, v{60+z}")
        rbf1(p, 52+z, 52+z)
        p(f"v_mul_f32 v{52+z}, {fhex(-LN2)}, v{52+z}")
    p(f"s_mov_b32 s74, {hex(GB)}\nbuffer_store_dwordx4 v[52:55], v48, {WS}, s74 offen {cfg.st}")

sRB, sCB = 92, 93
VVL = 143360
def g1_ids(p):
    p(f"""s_lshr_b32 s{sRB}, s{sXCD}, 1
    s_lshl_b32 s{sRB}, s{sRB}, 2
    s_lshr_b32 s65, s{sI}, 3
    s_add_u32 s{sRB}, s{sRB}, s65
    s_and_b32 s{sCB}, s{sXCD}, 1
    s_lshl_b32 s{sCB}, s{sCB}, 3
    s_and_b32 s65, s{sI}, 7
    s_add_u32 s{sCB}, s{sCB}, s65""")
def g1_wload(p):
    p(f"""s_mul_i32 s65, s{sCB}, 143360
    s_lshl_b32 s66, s{sWAVE}, 10
    s_add_u32 s65, s65, s66
    s_add_u32 s65, s65, {hex(W1F)}
    s_mov_b32 m0, s66
    v_lshlrev_b32 v3, 4, v1
    v_lshlrev_b32 v4, 2, v1""")
    for n in range(35):
        p(f"buffer_load_dwordx4 v3, {WS}, s65 offen {cfg.ld} lds")
        if n < 34: p("s_add_u32 m0, m0, 4096\ns_add_u32 s65, s65, 4096")
    p(f"""s_mul_i32 s65, s{sCB}, 448
    s_and_b32 s66, s{sWAVE}, 1
    s_lshl_b32 s66, s66, 8
    s_add_u32 s65, s65, s66
    s_add_u32 s65, s65, {hex(VV)}
    s_add_u32 m0, s66, {VVL}""")
    p(f"buffer_load_dword v4, {WS}, s65 offen {cfg.ld} lds", ('tok', 'w1'))
Bf = lambda ks, mt: 96+8*ks+4*mt
def g1_xload(p):
    p(f"""v_lshrrev_b32 v5, 4, v1
    v_and_b32 v6, 15, v1
    v_lshlrev_b32 v7, 15, v5
    v_lshl_add_u32 v7, v6, 4, v7
    s_lshl_b32 s65, s{sRB}, 2
    s_add_u32 s65, s65, s{sWAVE}
    s_lshl_b32 s65, s65, 8
    s_add_u32 s65, s65, {hex(X2)}
    s_add_u32 s66, s65, 16384""")
    for ks in range(20):
        p(f"buffer_load_dwordx4 {vr(Bf(ks,0),4)}, v7, {WS}, s65 offen {cfg.ld}\nbuffer_load_dwordx4 {vr(Bf(ks,1),4)}, v7, {WS}, s66 offen {cfg.ld}")
        if ks < 19: p("s_add_u32 s65, s65, 0x20000\ns_add_u32 s66, s66, 0x20000")
def g1_main(p, groups=((6,0,1),(2,3),(4,5))):
    Dm = lambda ft, mt: 32+4*(2*ft+mt)
    Sm = lambda mt: 88+4*mt
    p(f"""v_and_b32 v8, 3, v6
    v_cmp_eq_u32 s[68:69], 1, v8
    v_cmp_eq_u32 s[70:71], 2, v8
    v_cmp_eq_u32 s[72:73], 3, v8
    v_lshrrev_b32 v8, 2, v6
    v_lshl_add_u32 v8, v8, 4, v6
    v_lshlrev_b32 v8, 2, v8
    v_add_u32 v9, 48, v6
    v_lshlrev_b32 v9, 2, v9
    v_lshlrev_b32 v10, 4, v5
    v_add_u32 v10, {VVL}, v10
    v_add_u32 v4, 0xe000, v3
    v_add_u32 v5, 0x1c000, v3
    s_lshl_b32 s65, s{sRB}, 3
    s_lshl_b32 s66, s{sWAVE}, 1
    s_add_u32 s65, s65, s66
    s_mul_i32 s65, s65, 56
    s_lshr_b32 s66, s{sCB}, 1
    s_mul_i32 s66, s66, 7
    s_add_u32 s65, s65, s66
    s_and_b32 s66, s{sCB}, 1
    s_lshl_b32 s67, s66, 3
    s_mul_i32 s66, s66, 3
    s_add_u32 s74, s65, s66
    s_lshl_b32 s74, s74, 10
    s_add_u32 s74, s74, {hex(H1)}
    s_add_u32 s75, s74, {56*1024}
    s_add_u32 s76, s65, 6
    s_lshl_b32 s76, s76, 10
    s_add_u32 s76, s76, s67
    s_add_u32 s76, s76, {hex(H1)}
    s_add_u32 s77, s76, {56*1024}""")
    if not cfg.fused:
        p("s_nop 0", ('waitvm', 'w1'))
        stamp(p, 2)
        p("s_barrier")
        stamp(p, 3)
    def wread(ks, ft, slot):
        n = 7*ks+ft; b = n // 56
        return mk(f"ds_read_b128 {ar(4*slot,4)}, v{(3,4,5)[b]} offset:{1024*(n-56*b)}")
    def stats():
        o = []
        for mt in range(2):
            s = Sm(mt); t = 12+mt; u = 14+mt
            o += mk(f"""v_cndmask_b32 v{t}, v{s}, v{s+1}, s[68:69]
            v_cndmask_b32 v{t}, v{t}, v{s+2}, s[70:71]
            v_cndmask_b32 v{t}, v{t}, v{s+3}, s[72:73]
            ds_bpermute_b32 v{u}, v9, v{Dm(6,mt)}
            ds_bpermute_b32 v{t}, v8, v{t}""")
        for x in ("v_mul_f32 v{u}, %s, v{u}" % fhex(1/640), "v_mul_f32 v{t}, %s, v{t}" % fhex(1/640), "v_fma_f32 v{t}, -v{u}, v{u}, v{t}",
                  "v_max_f32 v{t}, 0, v{t}", "v_cvt_pk_bf16_f32 v{t}, v{t}, v{t}", "v_lshlrev_b32 v{t}, 16, v{t}", "v_add_f32 v{t}, %s, v{t}" % fhex(1e-5),
                  "v_cvt_pk_bf16_f32 v{t}, v{t}, v{t}", "v_lshlrev_b32 v{t}, 16, v{t}", "v_sqrt_f32 v{t}, v{t}", "v_cvt_pk_bf16_f32 v{t}, v{t}, v{t}",
                  "v_lshlrev_b32 v{t}, 16, v{t}", "v_rcp_f32 v{t}, v{t}", "v_mul_f32 v{t}, %s, v{t}" % fhex(-LOG2E)):
            for mt in range(2): o += mk(x.format(t=12+mt, u=14+mt))
        return o
    def epi(ft):
        o = mk(f"ds_read_b128 v[16:19], v10 offset:{64*ft}")
        for mt in range(2):
            d = Dm(ft, mt); base = Dm(ft & ~1, mt) if ft < 6 else d
            for r in range(4): o += mk(f"v_fma_f32 v{d+r}, v{d+r}, v{12+mt}, v{16+r}")
            T = 20+4*mt
            for r in range(4): o += mk(f"v_exp_f32 v{T+r}, v{d+r}")
            for r in range(4): o += mk(f"v_add_f32 v{T+r}, 1.0, v{T+r}")
            for r in range(4): o += mk(f"v_rcp_f32 v{T+r}, v{T+r}")
            for r in range(4): o += mk(f"v_mul_f32 v{d+r}, v{d+r}, v{T+r}")
            k = 2*(ft & 1) if ft < 6 else 0
            o += mk(f"v_cvt_pk_bf16_f32 v{base+k}, v{d}, v{d+1}\nv_cvt_pk_bf16_f32 v{base+k+1}, v{d+2}, v{d+3}")
            if ft == 6: o.append(Ins(f"buffer_store_dwordx2 {vr(base,2)}, v3, {WS}, s{76+mt} offen {cfg.st}", ('tok', 'h1st')))
            elif ft & 1: o.append(Ins(f"buffer_store_dwordx4 {vr(base,4)}, v3, {WS}, s{74+mt} offen offset:{1024*(ft>>1)} {cfg.st}", ('tok', 'h1st')))
        return o
    main = []; fill = []; rates = []
    NS = 16; seq = [(g, ks, ft) for g, grp in enumerate(groups) for ks in range(20) for ft in grp]
    AH = 6
    pre = []
    for z in range(AH): pre += wread(seq[z][1], seq[z][2], z % NS)
    p.extend(pre)
    for z, (g, ks, ft) in enumerate(seq):
        first = ft == groups[g][0]
        grp = []
        if g == 0 and first:
            grp += mk(f"v_swap_b32 v{Bf(ks,0)+2}, v{Bf(ks,1)}\nv_swap_b32 v{Bf(ks,0)+3}, v{Bf(ks,1)+1}")
        if g > 0 and ks == 0 and first:
            lst = []
            if g == 1: lst += stats()
            for f2 in groups[g-1]: lst += epi(f2)
            fill.append((len(main)+2, lst))
        for mt in range(2):
            c = '0' if ks == 0 else vr(Dm(ft, mt), 4)
            ins = mk(f"v_mfma_f32_16x16x32_bf16 {vr(Dm(ft,mt),4)}, {ar(4*(z % NS),4)}, {vr(Bf(ks,mt),4)}, {c}")
            has = mt == 0 and z+AH < len(seq)
            if has: ins += wread(seq[z+AH][1], seq[z+AH][2], (z+AH) % NS)
            main.append(grp+ins); grp = []; rates.append(1.0 if has else 2.0)
        if g == 0 and ft == groups[0][-1]:
            for mt in range(2):
                c = '0' if ks == 0 else vr(Sm(mt), 4)
                main.append(mk(f"v_mfma_f32_16x16x32_bf16 {vr(Sm(mt),4)}, {vr(Bf(ks,mt),4)}, {vr(Bf(ks,mt),4)}, {c}")); rates.append(2.0)
    lst = []
    for f2 in groups[-1]: lst += epi(f2)
    fill.append((len(main), lst))
    p.extend(interleave(main, fill, lambda g: rates[g]*1.5))

sRB2, sCB2 = 94, 95
def W2r(k, nt):
    z = 5*k+nt
    return ar(4*z, 4) if z < 64 else vr(232+4*(z-64), 4)
def g2_ids(p):
    p(f"""s_lshl_b32 s{sRB2}, s{sXCD}, 2
    s_lshr_b32 s65, s{sI}, 3
    s_add_u32 s{sRB2}, s{sRB2}, s65
    s_and_b32 s{sCB2}, s{sI}, 7""")
def g2_wload(p):
    p(f"""s_mul_i32 s65, s{sCB2}, 286720
    s_mul_i32 s66, s{sWAVE}, {14*5120}
    s_add_u32 s65, s65, s66
    s_add_u32 s65, s65, {hex(W2F)}
    v_lshlrev_b32 v3, 4, v1""")
    for z in range(70):
        p(f"buffer_load_dwordx4 {W2r(z//5, z%5)}, v3, {WS}, s65 offen offset:{1024*(z%4)} {cfg.ld}")
        if z % 4 == 3: p("s_add_u32 s65, s65, 4096")
RING = 28
Hr = lambda z: 120+4*(z % RING)
def g2_hload(z):
    i, k = divmod(z, 14)
    o = []
    if k % 4 == 0 and k: o += mk(f"s_add_u32 s{66+i}, s{66+i}, 4096")
    o += mk(f"buffer_load_dwordx4 {vr(Hr(z),4)}, v3, {WS}, s{66+i} offen offset:{1024*(k%4)} {cfg.ld}")
    return o
def g2_hids(p):
    for i in range(4):
        p(f"""s_add_u32 s70, s{sWAVE}, {i+1}
        s_and_b32 s70, s70, 3
        s_mul_i32 s{72+i}, s70, 15360
        s_lshl_b32 s71, s{sRB2}, 2
        s_add_u32 s70, s70, s71
        s_mul_i32 s70, s70, 56
        s_mul_i32 s71, s{sWAVE}, 14
        s_add_u32 s70, s70, s71
        s_lshl_b32 s70, s70, 10
        s_add_u32 s{66+i}, s70, {hex(H1)}""")
def g2_main(p):
    acc = lambda i, nt: 40+20*(i & 1)+4*nt
    Pp, Q1, Q2 = 80, 100, 40
    srd(p, RA, sOUT, L*D*2)
    for z in range(RING): p.extend(g2_hload(z))
    p(f"""v_lshrrev_b32 v5, 4, v1
    v_and_b32 v6, 15, v1
    v_add_u32 v7, s72, v3
    v_add_u32 v8, s73, v3
    v_add_u32 v9, s74, v3
    v_add_u32 v4, s75, v3""")
    def epi_loads():
        o = mk(f"""v_lshlrev_b32 v80, 4, v6
        v_lshl_add_u32 v81, v5, 14, v80
        v_lshl_add_u32 v80, v5, 15, v80
        s_mul_i32 s76, s{sCB2}, {20*16384}
        s_lshl_b32 s77, s{sRB2}, 1
        s_lshr_b32 s78, s{sWAVE}, 1
        s_add_u32 s77, s77, s78
        s_lshl_b32 s77, s77, 8
        s_add_u32 s76, s76, s77
        s_and_b32 s78, s{sWAVE}, 1
        s_lshl_b32 s78, s78, 3
        s_add_u32 s76, s76, s78
        s_add_u32 s76, s76, {hex(X2)}""")
        for nt in range(5):
            g = 8*(nt >> 1)+(nt & 1) if nt < 4 else 16
            o += mk(f"s_add_u32 s77, s76, {g*16384}\nbuffer_load_dwordx2 {vr(10+2*nt,2)}, v{80 if nt < 4 else 81}, {WS}, s77 offen {cfg.ld}")
        o += mk(f"""v_lshlrev_b32 v80, 5, v5
        v_lshlrev_b32 v81, 4, v5
        s_mul_i32 s76, s{sCB2}, 320
        s_add_u32 s76, s76, {hex(GB)}""")
        for nt in range(5):
            off = 128*(nt >> 1)+16*(nt & 1) if nt < 4 else 256
            o += mk(f"buffer_load_dwordx4 {vr(20+4*nt,4)}, v{80 if nt < 4 else 81}, {WS}, s76 offen offset:{off} {cfg.ld}")
        return o
    main = []; fill = []; rates = []
    for z in range(56):
        i, k = divmod(z, 14)
        if k == 0 and i > 0:
            lst = []
            for nt in range(5): lst += mk(f"ds_write_b128 v{7+i-1}, {vr(acc(i-1,nt),4)} offset:{(i-1)*5120+1024*nt}")
            if i == 3:
                lst += mk("s_waitcnt lgkmcnt(0)\ns_barrier")
                for s_, q in enumerate((Pp, Q1, Q2)):
                    for nt in range(5): lst += mk(f"ds_read_b128 {vr(q+4*nt,4)}, v4 offset:{s_*5120+1024*nt}")
                for x in range(20): lst += mk(f"v_add_f32 v{Pp+x}, v{Pp+x}, v{Q1+x}")
                for x in range(20): lst += mk(f"v_add_f32 v{Pp+x}, v{Pp+x}, v{Q2+x}")
                for nt in range(5):
                    for h in range(2):
                        lst += mk(f"v_lshlrev_b32 v{Q1+4*nt+2*h}, 16, v{10+2*nt+h}\nv_and_b32 v{Q1+4*nt+2*h+1}, 0xffff0000, v{10+2*nt+h}")
                for x in range(20): lst += mk(f"v_fmac_f32 v{Q1+x}, v{20+x}, v{Pp+x}")
                lst += mk(f"""v_and_b32 v7, 7, v6
                v_lshrrev_b32 v8, 3, v6
                v_lshlrev_b32 v7, 5, v7
                v_lshl_add_u32 v7, v8, 2, v7
                v_mul_u32_u24 v7, 1280, v7
                v_lshl_add_u32 v8, v5, 3, v7
                v_lshl_add_u32 v7, v5, 4, v7
                s_lshr_b32 s76, s{sRB2}, 2
                s_lshl_b32 s76, s76, 8
                s_and_b32 s77, s{sRB2}, 3
                s_add_u32 s76, s76, s77
                s_lshl_b32 s77, s{sWAVE}, 3
                s_add_u32 s76, s76, s77
                s_mul_i32 s76, s76, 1280
                s_mul_i32 s77, s{sCB2}, 160
                s_add_u32 s76, s76, s77""")
            fill.append((len(main)+2, lst))
        for nt in range(5):
            c = '0' if k == 0 else vr(acc(i, nt), 4)
            ins = mk(f"v_mfma_f32_16x16x32_bf16 {vr(acc(i,nt),4)}, {W2r(k,nt)}, {vr(Hr(z),4)}, {c}")
            r = 2.0
            if nt == 4 and z+RING < 56: ins += g2_hload(z+RING); r = 0.5
            if nt == 4 and z+RING == 56: fill.append((len(main)+1, epi_loads()))
            main.append(ins); rates.append(r)
    if STAMPS: p(f"v_mov_b32 v0, v{Hr(0)}"); stamp(p, 12 if cfg.fused else 2)
    p.extend(interleave(main, fill, lambda g: rates[g]))
    if not cfg.fused: stamp(p, 3)
    for x in range(20): p(f"v_fmac_f32 v{Q1+x}, v{20+x}, v{acc(3,0)+x}")
    for z in range(10): p(f"v_cvt_pk_bf16_f32 v{Pp+z}, v{Q1+2*z}, v{Q1+2*z+1}")
    p(f"""buffer_store_dwordx4 {vr(Pp,4)}, v7, {R(RA)}, s76 offen
    buffer_store_dwordx4 {vr(Pp+4,4)}, v7, {R(RA)}, s76 offen offset:64
    buffer_store_dwordx2 {vr(Pp+8,2)}, v8, {R(RA)}, s76 offen offset:128""")

STAMP = 0x60000
STAMPS = os.environ.get('STAMPS')
class St: n = 0
def stamp(p, k):
    if STAMPS: p(f"{'s_memtime' if STAMPS=='cyc' else 's_memrealtime'} s[100:101]\ns_waitcnt lgkmcnt(0)\nv_writelane_b32 v2, s100, {k}")
def stamp_init(p):
    if STAMPS: p("v_mov_b32 v2, 0")
def stamp_out(p, base):
    if STAMPS: p(f"""s_lshl_b32 s100, s2, 2
    s_add_u32 s100, s100, s{sWAVE}
    s_lshl_b32 s100, s100, 8
    s_add_u32 s100, s100, {hex(STAMP+base*64)}
    v_lshlrev_b32 v1, 2, v1
    s_mov_b64 exec, 0xffff
    buffer_store_dword v2, v1, {WS}, s100 offen""")
DBGOUT = os.environ.get('DBGOUT')
def dbg_out(p):
    if not DBGOUT: return
    a, b = [int(x) for x in DBGOUT.split(',')]
    srd(p, RA, sDBG, 256)
    p(f"""v_readlane_b32 s100, v2, 0
    s_mov_b64 exec, -1
    v_subrev_u32 v2, s100, v2
    v_mbcnt_lo_u32_b32 v1, -1, 0
    v_mbcnt_hi_u32_b32 v1, -1, v1
    v_lshlrev_b32 v1, 2, v1
    s_mov_b32 s101, 0x1000
    s_cmp_eq_u32 s2, {a}
    s_cselect_b32 s101, 0, s101
    s_cmp_eq_u32 s2, {b}
    s_cselect_b32 s101, {32 if b >= 0 else 0}, s101
    s_cmp_eq_u32 s{sWAVE}, 0
    s_cselect_b32 s101, s101, 0x1000
    s_mov_b64 exec, {0xff if b >= 0 else 0xffff}
    buffer_store_dword v2, v1, {R(RA)}, s101 offen""")
def kernel_text(name, segs):
    s = f".p2align 8\n.globl {name}\n.type {name},@function\n{name}:\n"
    for sg in segs: s += text(finalize(sg.ins))
    return s
def kd(name, vg=512, sg=102):
    return f""".p2align 6
.amdhsa_kernel {name}
  .amdhsa_next_free_vgpr {vg}
  .amdhsa_next_free_sgpr {sg}
  .amdhsa_accum_offset 256
  .amdhsa_group_segment_fixed_size 0
  .amdhsa_kernarg_size 120
  .amdhsa_user_sgpr_count 2
  .amdhsa_user_sgpr_kernarg_segment_ptr 1
  .amdhsa_system_sgpr_workgroup_id_x 1
.end_amdhsa_kernel
"""
def roles2(p, lab):
    p(f"""s_cmp_lt_u32 s{sI}, 20
    s_cbranch_scc1 {lab}_conv
    s_cmp_lt_u32 s{sI}, 27
    s_cbranch_scc1 {lab}_w1
    s_sub_u32 s71, s{sI}, 27
    s_lshl_b32 s71, s71, 3
    s_add_u32 s71, s71, s{sXCD}
    s_cmp_lt_u32 s71, 28
    s_cbranch_scc1 {lab}_w2
    s_cmp_eq_u32 s71, 28
    s_cbranch_scc0 {lab}_end""")

import os
DEBUG = os.environ.get('DEBUG')
def dump_lds(p):
    p(f"v_lshlrev_b32 v64, 4, v0\ns_lshl_b32 s90, s71, 16\ns_add_u32 s90, s90, {hex(H1)}\nv_add_u32 v65, {FT0}, v64")
    for k in range(9):
        p(f"ds_read_b128 v[68:71], v64 offset:{4096*k}\nbuffer_store_dwordx4 v[68:71], v64, {WS}, s90 offen\ns_add_u32 s90, s90, 4096\ns_waitcnt vmcnt(0)")
    for k in range(5):
        p(f"ds_read_b128 v[68:71], v65 offset:{4096*k}\nbuffer_store_dwordx4 v[68:71], v64, {WS}, s90 offen\ns_add_u32 s90, s90, 4096\ns_waitcnt vmcnt(0)")
def multi():
    out = ""
    for k in range(1, 5): out += f"; @launch kernel=k{k}_kernel grid=(256,1,1) block=(256,1,1) lds=163840\n"
    out += '.amdgcn_target "amdgcn-amd-amdhsa--gfx950"\n.text\n'
    def fin(p, k, n):
        stamp(p, n)
        if STAMPS: p("s_waitcnt vmcnt(0)")
        stamp(p, n+1); stamp_out(p, k)
    p = Prog(); preamble(p, 'k1'); stamp_init(p); stamp(p, 0); phase1_loads(p); stamp(p, 1)
    if STAMPS: p("s_waitcnt vmcnt(10)"); stamp(p, 2); p("s_waitcnt vmcnt(0)"); stamp(p, 3)
    phase1_compute(p); fin(p, 0, 4); dbg_out(p); p("k1_end:\ns_endpgm")
    out += kernel_text('k1_kernel', [p])
    p0 = Prog(); preamble(p0, 'k2'); stamp_init(p0); stamp(p0, 0); roles2(p0, 'k2')
    pg = Prog(); gbh(pg); fin(pg, 1, 7); pg("s_endpgm\nk2_w2:")
    p2 = Prog(); w2h(p2); fin(p2, 1, 7); p2("s_endpgm\nk2_w1:")
    p1 = Prog(); p1(f"s_mul_i32 s71, s{sXCD}, 7\ns_add_u32 s71, s71, s{sI}\ns_sub_u32 s71, s71, 20"); w1h_loads(p1); w1h_compute(p1); fin(p1, 1, 7); p1("s_endpgm\nk2_conv:")
    pc = Prog(); pc(f"s_mul_i32 s71, s{sXCD}, 20\ns_add_u32 s71, s71, s{sI}")
    kgen_loads(pc); conv_loads(pc); stamp(pc, 1)
    if STAMPS: pc("s_waitcnt vmcnt(9)")
    stamp(pc, 2); kgen_compute(pc); stamp(pc, 3); pc("s_waitcnt lgkmcnt(0)\ns_barrier"); conv_prep(pc); conv_addr(pc)
    pc("s_waitcnt lgkmcnt(0)\ns_barrier"); stamp(pc, 4)
    if DEBUG: dump_lds(pc)
    conv_main(pc); stamp(pc, 5); conv_store(pc); fin(pc, 1, 7); pc("k2_end:\ns_endpgm")
    out += kernel_text('k2_kernel', [p0, pg, p2, p1, pc])
    p = Prog(); preamble(p, 'k3'); stamp_init(p); stamp(p, 0); g1_ids(p); g1_wload(p); g1_xload(p); stamp(p, 1); g1_main(p); fin(p, 2, 7); p("k3_end:\ns_endpgm")
    out += kernel_text('k3_kernel', [p])
    p = Prog(); preamble(p, 'k4'); stamp_init(p); stamp(p, 0); g2_ids(p); g2_wload(p); stamp(p, 1); g2_hids(p); g2_main(p); fin(p, 3, 7); p("k4_end:\ns_endpgm")
    out += kernel_text('k4_kernel', [p])
    out += '.section .rodata,"a"\n' + ''.join(kd(f'k{k}_kernel') for k in range(1, 5))
    return out


sTAG = 34
FS = 128
F1, F2, FH, F3 = 0x1000, 0x10000, 0x18000, 0x20000
class Lb: n = 0
def publish(p, base, sidx, tok=None):
    if tok: p("s_nop 0", ('waitvm', tok))
    else: p("s_waitcnt vmcnt(0)")
    p(f"""s_barrier
    s_mul_i32 s96, s{sidx}, {FS}
    s_add_u32 s96, s96, {hex(FLAGS+base)}
    s_cmp_eq_u32 s{sWAVE}, 0
    s_cselect_b32 s96, s96, 0x7f000000
    v_mov_b32 v94, s{sTAG}
    v_mov_b32 v95, 0
    s_mov_b64 exec, 1
    buffer_store_dword v94, v95, {WS}, s96 offen sc1
    s_mov_b64 exec, -1""")
def poll(p, va, vt, soff):
    Lb.n += 1; l = f"Lpoll{Lb.n}"
    p(f"""s_mov_b32 s97, 0
    {l}:
    buffer_load_dword v{vt}, v{va}, {WS}, {soff} offen sc1
    s_add_u32 s97, s97, 1
    s_cmp_gt_u32 s97, 0x40000
    s_cbranch_scc1 {l}_x
    s_waitcnt vmcnt(0)
    v_cmp_ne_u32 vcc, s{sTAG}, v{vt}
    s_cbranch_vccnz {l}
    {l}_x:
    s_waitcnt vmcnt(0)""")
def poll1(p):
    p(f"v_mul_u32_u24 v94, {FS}, v0\ns_mov_b32 s96, {hex(FLAGS+F1)}"); poll(p, 94, 95, 's96'); p("s_barrier")
def hflag_addr(p, va):
    p(f"""s_mul_i32 s96, s{sCB}, 7
    s_lshr_b32 s96, s96, 1
    v_add_u32 v{va}, s96, v1
    v_min_u32 v95, 32, v1
    v_add_u32 v95, 52, v95
    v_cmp_gt_u32 vcc, 4, v1
    v_cndmask_b32 v{va}, v95, v{va}, vcc
    v_mul_u32_u24 v{va}, {FS}, v{va}
    s_mov_b32 s96, {hex(FLAGS+FH)}""")
def fin(p, k, n):
    stamp(p, n)
    if STAMPS: p("s_waitcnt vmcnt(0)")
    stamp(p, n+1); stamp_out(p, k); dbg_out(p)

def fused():
    cfg.fused = True; cfg.st = 'sc1'; cfg.ld = 'sc1'
    name = KNAME + '_kernel'
    out = "; @launch grid=(256,1,1) block=(256,1,1) lds=163840\n"
    out += '.amdgcn_target "amdgcn-amd-amdhsa--gfx950"\n.text\n'
    p = Prog(); preamble(p, 'F'); stamp_init(p); stamp(p, 0)
    p(f"s_load_dword s35, s[{sWS}:{sWS+1}], {FLAGS}")
    phase1_loads(p)
    p(f"s_mul_i32 s71, s{sXCD}, 20\ns_min_u32 s72, s{sI}, 19\ns_add_u32 s71, s71, s72")
    kgen_loads(p); g1_ids(p); g2_ids(p)
    phase1_compute(p, P1L)
    p(f"s_mul_i32 s{sTAG}, s35, 0x9e3779b1\ns_add_u32 s{sTAG}, s{sTAG}, 0x7f4a7c15")
    stamp(p, 1)
    publish(p, F1, 2); stamp(p, 2)
    p(f"""s_cmp_lt_u32 s{sI}, 20
    s_cbranch_scc1 F_conv
    s_cmp_lt_u32 s{sI}, 27
    s_cbranch_scc1 F_w1
    s_sub_u32 s71, s{sI}, 27
    s_lshl_b32 s71, s71, 3
    s_add_u32 s71, s71, s{sXCD}
    s_cmp_lt_u32 s71, 28
    s_cbranch_scc1 F_w2
    s_cmp_eq_u32 s71, 28
    s_cbranch_scc0 F_g1w""")
    pg = Prog(); poll1(pg); gbh(pg); pg("s_add_u32 s71, s71, 56"); publish(pg, FH, 71); pg("s_branch F_g1w\nF_w2:")
    p2 = Prog(); w2h(p2); p2("s_add_u32 s71, s71, 56"); publish(p2, FH, 71); p2("s_branch F_g1w\nF_w1:")
    p1 = Prog(); p1(f"s_mul_i32 s71, s{sXCD}, 7\ns_add_u32 s71, s71, s{sI}\ns_sub_u32 s71, s71, 20"); w1h_loads(p1); poll1(p1); stamp(p1, 4); w1h_compute(p1)
    publish(p1, FH, 71); stamp(p1, 6); p1("F_g1w:")
    pw = Prog(); hflag_addr(pw, 94); poll(pw, 94, 95, 's96'); g1_wload(pw); pw("s_branch F_g1x\nF_conv:")
    pc = Prog()
    kgen_compute(pc); stamp(pc, 3); pc("s_waitcnt lgkmcnt(0)"); poll1(pc); stamp(pc, 4)
    conv_loads(pc)
    pc(f"""s_cmp_eq_u32 s2, 0
    s_cselect_b32 s96, {FLAGS}, 0x7f000000
    v_mov_b32 v94, s{sTAG}
    v_mov_b32 v95, 0
    buffer_store_dword v94, v95, {WS}, s96 offen sc1""")
    conv_prep(pc); conv_addr(pc); hflag_addr(pc, 15)
    pc("s_waitcnt lgkmcnt(0)\ns_barrier"); stamp(pc, 5)
    conv_main(pc); stamp(pc, 6); poll(pc, 15, 95, 's96'); conv_store(pc); g1_wload(pc); publish(pc, F2, 71, 'x2st'); stamp(pc, 7)
    pc("F_g1x:")
    px = Prog()
    px(f"v_min_u32 v94, 159, v0\nv_mul_u32_u24 v94, {FS}, v94\ns_mov_b32 s96, {hex(FLAGS+F2)}"); poll(px, 94, 95, 's96')
    px("s_barrier"); stamp(px, 8)
    g1_xload(px); g1_main(px); stamp(px, 9)
    px(f"s_lshl_b32 s65, s{sRB}, 4\ns_add_u32 s98, s65, s{sCB}")
    g2_wload(px); publish(px, F3, 98, 'h1st'); stamp(px, 10)
    px(f"""s_lshr_b32 s96, s{sRB2}, 1
    s_mul_i32 s96, s96, {16*FS}
    s_add_u32 s96, s96, {hex(FLAGS+F3)}
    v_and_b32 v94, 15, v1
    v_mul_u32_u24 v94, {FS}, v94""")
    g2_hids(px); poll(px, 94, 95, 's96'); stamp(px, 11)
    g2_main(px); fin(px, 0, 13); px("F_end:\ns_endpgm")
    out += kernel_text(name, [p, pg, p2, p1, pw, pc, px])
    out += '.section .rodata,"a"\n' + kd(name)
    return out

if __name__ == '__main__':
    open(sys.argv[1], 'w').write(multi() if os.environ.get('MULTI') else fused())
```

```python
import sys
def span(src,dst,mult=8):
    s=open(src).read()
    endlab='F_fin:' if 'F_fin:' in s else 'F_end:'
    k=s.index('    s_waitcnt lgkmcnt(0)\n')+len('    s_waitcnt lgkmcnt(0)\n')
    s=s[:k]+'    s_memrealtime s[100:101]\n    s_waitcnt lgkmcnt(0)\n'+s[k:]
    code=f"""    s_waitcnt vmcnt(0)
    s_barrier
    s_cmp_eq_u32 s60, 0
    s_cbranch_scc0 F_spx
    s_memrealtime s[66:67]
    s_waitcnt lgkmcnt(0)
    s_mov_b64 exec, 1
    v_mov_b32 v10, 0
    s_not_b32 s100, s100
    v_mov_b32 v11, s100
    v_mov_b32 v12, s66
    v_mov_b32 v13, 1
    global_atomic_umax v10, v11, s[30:31] sc1
    global_atomic_umax v10, v12, s[30:31] offset:128 sc1
    s_waitcnt vmcnt(0)
    global_atomic_add v14, v10, v13, s[30:31] offset:64 sc0 sc1
    s_waitcnt vmcnt(0)
    v_readfirstlane_b32 s64, v14
    s_nop 3
    s_cmp_eq_u32 s64, 255
    s_cbranch_scc0 F_spx
    global_atomic_add v15, v10, v10, s[30:31] sc0 sc1
    global_atomic_add v16, v10, v10, s[30:31] offset:128 sc0 sc1
    s_waitcnt vmcnt(0)
    v_readfirstlane_b32 s64, v15
    v_readfirstlane_b32 s65, v16
    s_nop 3
    s_not_b32 s64, s64
    s_sub_u32 s64, s65, s64
    v_mov_b32 v11, s64
    global_store_dword v10, v11, s[30:31] offset:4
    s_mul_i32 s64, s64, {mult}
F_spl:
    s_memrealtime s[68:69]
    s_waitcnt lgkmcnt(0)
    s_sub_u32 s66, s68, s65
    s_cmp_lt_u32 s66, s64
    s_cbranch_scc1 F_spl
F_spx:
"""
    s=s.replace(endlab+'\n',code+endlab+'\n',1)
    open(dst,'w').write(s)
if __name__=='__main__':
    for f in sys.argv[1:]: span(f,f.replace('v_','w_'))
```
